```python
import torch

def _softmax(x, axis=-1):
    return torch.softmax(x, dim=axis)

def _gelu(x):
    return torch.nn.functional.gelu(x, approximate='tanh')

def _silu(x):
    return torch.nn.functional.silu(x)

def _sigmoid(x):
    return torch.sigmoid(x)

def _layernorm(x, axis=-1, eps=1e-05):
    m = x.mean(dim=axis, keepdim=True)
    v = x.var(dim=axis, keepdim=True, unbiased=False)
    return (x - m) / torch.sqrt(v + eps)

def _scatter_add(tgt, idx, src, axis=0):
    return tgt.clone().index_add_(axis, idx, src)

def _segment_sum(src, seg, n):
    out = torch.zeros((n,) + src.shape[1:], dtype=src.dtype)
    return out.index_add_(0, seg, src)

def _pad(x, pw):
    flat = tuple((v for pair in reversed(pw) for v in pair))
    return torch.nn.functional.pad(x, flat)
kernel_name = 'adaLN_cond__memory_aug_recurrent_mem_tr__glu_gated_swiglu__prompt'

def setup_inputs():

    _w = lambda a: (lambda t: t.to(torch.bfloat16) if t.is_floating_point() else t)(torch.as_tensor(a))

    def _A_setup():
        B, S, Dm = (1, 2048, 512)
        H, Dh = (32, 128)
        M, seg = (8, 32)
        seg = min(seg, S)
        S = S // seg * seg
        return {'x': _w((lambda *s: torch.randn(*s, dtype=torch.bfloat16) * 0.05)(B, S, Dm)), 'mem0': _w((lambda *s: torch.randn(*s, dtype=torch.bfloat16) * 0.8)(B, M, Dm)), 'Wq': _w((lambda *s: torch.randn(*s, dtype=torch.bfloat16) * 0.8)(Dm, H, Dh) * Dm ** (-0.5)), 'Wk': _w((lambda *s: torch.randn(*s, dtype=torch.bfloat16) * 0.8)(Dm, H, Dh) * Dm ** (-0.5)), 'Wv': _w((lambda *s: torch.randn(*s, dtype=torch.bfloat16) * 0.8)(Dm, H, Dh) * Dm ** (-0.5)), 'Wo': _w((lambda *s: torch.randn(*s, dtype=torch.bfloat16) * 0.8)(H, Dh, Dm) * (H * Dh) ** (-0.5)), 'seg_len': seg}
    _A_in = _A_setup()

    def _B_setup():
        B, S, D, F = (1, 2048, 512, 1376)
        return {'x': _w((lambda *s: torch.randn(*s, dtype=torch.bfloat16) * 0.05)(B, S, D)), 'w1': _w((lambda *s: torch.randn(*s, dtype=torch.bfloat16) * 0.4)(D, F) * (2.0 / D) ** 0.5), 'w3': _w((lambda *s: torch.randn(*s, dtype=torch.bfloat16) * 0.4)(D, F) * (2.0 / D) ** 0.5), 'w2': _w((lambda *s: torch.randn(*s, dtype=torch.bfloat16) * 0.4)(F, D) * (2.0 / F) ** 0.5)}
    _B_in = _B_setup()
    return {'A_x': _A_in['x'], 'A_mem0': _A_in['mem0'], 'A_Wq': _A_in['Wq'], 'A_Wk': _A_in['Wk'], 'A_Wv': _A_in['Wv'], 'A_Wo': _A_in['Wo'], 'A_seg_len': _A_in['seg_len'], 'B_x': _B_in['x'], 'B_w1': _B_in['w1'], 'B_w3': _B_in['w3'], 'B_w2': _B_in['w2'], 'c': _w((lambda *s: torch.randn(*s, dtype=torch.bfloat16) * 0.1)(1, 512) * 8.0), 'w_mod': _w((lambda *s: torch.randn(*s, dtype=torch.bfloat16) * 0.1)(512, 6 * 512) * 512 ** (-0.5) * 8.0)}

def reference(A_x, A_mem0, A_Wq, A_Wk, A_Wv, A_Wo, A_seg_len, B_x, B_w1, B_w3, B_w2, c, w_mod):

    def _A_ref(x, mem0, Wq, Wk, Wv, Wo, seg_len):
        B, S, Dm = x.shape
        H, Dh = (Wq.shape[1], Wq.shape[2])
        M = mem0.shape[1]
        scale = Dh ** (-0.5)
        n_seg = S // seg_len
        L = M + seg_len
        idx = torch.arange(L)
        mask = (idx[:, None] < M) | (idx[:, None] >= idx[None, :])
        mem = mem0
        outs = []
        for s in range(n_seg):
            xs = x[:, s * seg_len:(s + 1) * seg_len, :].clone()
            h = torch.concatenate([mem, xs], axis=1)
            q = torch.einsum('btd,dhe->bhte', h, Wq)
            k = torch.einsum('btd,dhe->bhte', h, Wk)
            v = torch.einsum('btd,dhe->bhte', h, Wv)
            scores = torch.einsum('bhqe,bhke->bhqk', q, k) * scale
            scores = torch.where(mask[None, None], scores, -1000000000.0)
            p = _softmax(scores, axis=-1)
            o = torch.einsum('bhqk,bhke->bhqe', p, v)
            o = torch.einsum('bhte,hed->btd', o, Wo)
            mem = o[:, :M, :].clone()
            outs.append(o[:, M:, :])
        return torch.concatenate(outs, axis=1)

    def _B_ref(x, w1, w3, w2):
        gate = torch.einsum('bsd,df->bsf', x, w1)
        up = torch.einsum('bsd,df->bsf', x, w3)
        h = _silu(gate) * up
        out = torch.einsum('bsf,fd->bsd', h, w2)
        return out
    x = A_x
    mod = (_silu(c) @ w_mod).reshape(c.shape[0], 6, 1, -1)
    sa, ca, ga, sb, cb, gb = (mod[:, 0].clone(), mod[:, 1].clone(), mod[:, 2].clone(), mod[:, 3].clone(), mod[:, 4].clone(), mod[:, 5].clone())
    h = _layernorm(x, axis=-1) * (1 + ca) + sa
    x = x + ga * _A_ref(h, A_mem0, A_Wq, A_Wk, A_Wv, A_Wo, A_seg_len)
    h = _layernorm(x, axis=-1) * (1 + cb) + sb
    x = x + gb * _B_ref(h, B_w1, B_w3, B_w2)
    return x
```

```python
import re, sys

REG = re.compile(r'^(v|a|s)(\d+)$')
RNG = re.compile(r'^(v|a|s)\[(\d+):(\d+)\]$')

def regs(tok):
    tok = tok.strip()
    if tok.startswith('-'): tok = tok[1:]
    if tok.startswith('|') and tok.endswith('|'): tok = tok[1:-1]
    m = REG.match(tok)
    if m: return {(m.group(1), int(m.group(2)))}
    m = RNG.match(tok)
    if m: return {(m.group(1), i) for i in range(int(m.group(2)), int(m.group(3)) + 1)}
    if tok == 'vcc': return {('s', 'vcc')}
    if tok in ('vcc_lo', 'vcc_hi'): return {('s', 'vcc')}
    if tok == 'exec': return {('s', 'exec')}
    if tok == 'm0': return {('s', 'm0')}
    return set()

TRANS = ('v_exp_f32', 'v_log_f32', 'v_rcp_f32', 'v_rsq_f32', 'v_sqrt_f32', 'v_sin_f32', 'v_cos_f32')

class Ins:
    __slots__ = ('text', 'op', 'ops', 'mods', 'kind', 'w', 'r', 'A', 'B', 'C', 'passes', 'dpp', 'label', 'target', 'wide', 'lds_dma', 'nop', 'line')
    def __init__(self, text):
        self.text = text
        t = text.split(';')[0].strip()
        self.label = None; self.target = None; self.kind = None
        self.w = set(); self.r = set(); self.A = self.B = self.C = set()
        self.passes = 0; self.dpp = False; self.wide = set(); self.lds_dma = False; self.nop = 0
        self.op = ''; self.ops = []; self.mods = ''
        if not t or t.startswith('.'):
            self.kind = 'dir'; return
        if t.endswith(':'):
            self.kind = 'label'; self.label = t[:-1]; return
        p = t.split(None, 1)
        self.op = op = p[0]
        rest = p[1] if len(p) > 1 else ''
        toks = [x.strip() for x in re.split(r',(?![^\[\(]*[\]\)])', rest)] if rest else []
        if toks:
            last = toks[-1].split(None, 1)
            if len(last) > 1 and not op.startswith('s_waitcnt'):
                toks[-1] = last[0]; self.mods = last[1]
        self.ops = toks
        R = [regs(x) for x in toks]
        U = lambda l: set().union(*l) if l else set()
        if op.startswith('v_mfma'):
            self.kind = 'mfma'; self.w = R[0]; self.A = R[1]; self.B = R[2]; self.C = R[3]
            self.r = R[1] | R[2] | R[3]
            self.passes = 8 if '32x32' in op else 4
        elif op.startswith('v_smfmac'):
            self.kind = 'mfma'; self.w = R[0]; self.A = R[1] | R[3]; self.B = R[2]; self.C = R[0]
            self.r = R[0] | R[1] | R[2] | R[3]
            self.passes = 8 if '32x32' in op else 4
        elif op.startswith('v_'):
            self.kind = 'valu'
            self.dpp = ('row_' in self.mods) or ('quad_perm' in self.mods) or ('wave_' in self.mods)
            if 'swap' in op:
                self.w = R[0] | R[1]; self.r = R[0] | R[1]
            elif op.startswith(('v_add_co', 'v_addc_co', 'v_sub_co', 'v_subb_co')):
                self.w = R[0] | R[1]; self.r = U(R[2:])
            elif op == 'v_nop':
                pass
            else:
                self.w = R[0]; self.r = U(R[1:])
                if op.startswith(('v_fmac', 'v_mac', 'v_dot2c', 'v_writelane')) or self.dpp: self.r = self.r | R[0]
        elif op.startswith('ds_'):
            self.kind = 'ds'
            if op.startswith(('ds_read', 'ds_bpermute', 'ds_permute', 'ds_swizzle')) or '_rtn' in op:
                self.w = R[0]; self.r = U(R[1:])
            else:
                self.r = U(R)
        elif op.startswith('buffer_'):
            self.kind = 'vm'
            mods = self.mods.split()
            if op.startswith('buffer_load'):
                if 'lds' in mods:
                    self.lds_dma = True; self.r = U(R) | {('s', 'm0')}
                else:
                    self.w = R[0]; self.r = U(R[1:])
            elif op.startswith('buffer_store'):
                self.r = U(R)
                if op.endswith(('x3', 'x4')): self.wide = R[0]
            elif op.startswith('buffer_atomic'):
                self.r = U(R)
                if 'sc0' in mods: self.w = R[0]
            else:
                pass
        elif op.startswith('global_'):
            self.kind = 'vm'
            mods = self.mods.split()
            if op.startswith('global_load'):
                self.w = R[0]; self.r = U(R[1:])
            elif op.startswith('global_store'):
                self.r = U(R)
                if op.endswith(('x3', 'x4')): self.wide = R[1]
            elif op.startswith('global_atomic'):
                if 'sc0' in mods: self.w = R[0]; self.r = U(R[1:])
                else: self.r = U(R)
        elif op.startswith('s_'):
            self.kind = 'salu'
            if op == 's_nop': self.nop = int(toks[0]) + 1
            elif op.startswith(('s_cbranch', 's_branch')):
                self.target = toks[0]
                if 'vcc' in op: self.r = {('s', 'vcc')}
            elif op.startswith(('s_load', 's_memtime', 's_memrealtime')):
                self.kind = 'smem'; self.w = R[0]; self.r = U(R[1:])
            elif op.startswith(('s_cmp', 's_bitcmp', 's_waitcnt', 's_barrier', 's_endpgm', 's_setprio', 's_sleep')):
                self.r = U(R)
            else:
                self.w = R[0]; self.r = U(R[1:])
                if 'saveexec' in op: self.w = self.w | {('s', 'exec')}
        else:
            raise ValueError('unknown instruction: ' + text)

def isv(S): return {x for x in S if x[0] in 'va'}
def iss(S): return {x for x in S if x[0] == 's'}

def need(p, c):
    n = 0; timed = 0
    if p.kind == 'valu':
        wv = isv(p.w); ws = iss(p.w)
        if c.kind == 'mfma' and wv & c.r: n = max(n, 2)
        if c.kind == 'valu':
            if c.dpp and wv & c.r: n = max(n, 2)
            if 'permlane' in c.op and wv & c.r: n = max(n, 2)
            if c.op.startswith(('v_readlane', 'v_readfirstlane')) and wv & c.r: n = max(n, 1)
            if p.op in TRANS and c.op not in TRANS and wv & c.r: n = max(n, 1)
            if ('op_sel' in p.mods or 'dst_sel' in p.mods) and wv & (c.r | c.w): n = max(n, 1)
            if ws & c.r: n = max(n, 4 if c.op.startswith(('v_readlane', 'v_writelane')) else 2)
        if c.kind == 'vm' and ws & c.r: n = max(n, 5)
    if p.kind == 'mfma':
        P = p.passes
        full = {4: 8, 8: 12}[P]; part = {4: 6, 8: 10}[P]; war = {4: 3, 8: 7}[P]
        if c.kind == 'mfma':
            if p.w & (c.A | c.B): timed = max(timed, full)
            if p.w & c.C and not (p.w == c.C and c.op == p.op): timed = max(timed, part)
            if p.w & c.w and not (p.w == c.C and c.op == p.op): timed = max(timed, part)
        elif c.kind == 'valu':
            if p.w & (c.r | c.w): timed = max(timed, full)
            if p.C & c.w: timed = max(timed, war)
        elif c.kind in ('ds', 'vm'):
            if p.w & (c.r | c.w): timed = max(timed, full)
            if p.C & c.w: timed = max(timed, war)
    if p.kind == 'vm' and p.wide:
        if c.kind == 'valu' and p.wide & c.w: n = max(n, 2)
        elif p.wide & c.w: n = max(n, 2)
    if p.kind == 'salu' and ('s', 'm0') in p.w and c.lds_dma: n = max(n, 1)
    return n, timed

def build_cfg(ins):
    lab = {x.label: i for i, x in enumerate(ins) if x.kind == 'label'}
    succ = [[] for _ in ins]
    for i, x in enumerate(ins):
        if x.op == 's_endpgm': continue
        if x.op == 's_branch': succ[i].append(lab[x.target]); continue
        if x.target is not None: succ[i].append(lab[x.target])
        if i + 1 < len(ins): succ[i].append(i + 1)
    return succ

def fix_hazards(lines, verbose=False):
    ins = [Ins(l) for l in lines]
    total = 0
    while True:
        succ = build_cfg(ins)
        pad = {}
        for i, p in enumerate(ins):
            if p.kind not in ('valu', 'mfma', 'vm', 'salu'): continue
            if p.kind == 'vm' and not p.wide: continue
            if p.kind == 'salu' and ('s', 'm0') not in p.w: continue
            lim = 14 if p.kind == 'mfma' else 6
            m0 = (0, p) if p.kind == 'mfma' else None
            stack = [(j, 0, 0, m0) for j in succ[i]]
            seen = set()
            while stack:
                j, st, t, lm = stack.pop()
                c = ins[j]
                key = (j, st, t)
                if key in seen: continue
                seen.add(key)
                if c.kind in ('dir', 'label'):
                    for k in succ[j]: stack.append((k, st, t, lm))
                    continue
                tc = t + 1
                if lm is not None:
                    if c.kind == 'mfma': tc = max(tc, lm[0] + lm[1].passes)
                    elif c.kind == 'valu': tc = max(tc, lm[0] + (3 if lm[1].op.startswith('v_smfmac') else 2))
                n, timed = need(p, c)
                short = 0
                if n > st: short = n - st
                if timed and tc < timed + 1: short = max(short, timed + 1 - (t + 1))
                if short > 0:
                    pad[j] = max(pad.get(j, 0), short)
                    continue
                st2 = st + (c.nop if c.nop else 1)
                t2 = tc + (c.nop - 1 if c.nop else 0)
                lm2 = (tc, c) if c.kind == 'mfma' else lm
                if st2 >= lim or t2 >= lim: continue
                for k in succ[j]: stack.append((k, st2, t2, lm2))
        if not pad: break
        first = min(pad)
        applied = []
        lastj = -100
        for j in sorted(pad):
            if j - lastj < 16: continue
            applied.append(j); lastj = j
        for j in sorted(applied, reverse=True):
            n = pad[j]; total += n
            new = []
            while n > 0:
                k = min(n, 16); new.append(Ins(f's_nop {k-1} ; hz')); n -= k
            if verbose: print('pad', pad[j], 'before', ins[j].text, file=sys.stderr)
            ins[j:j] = new
    return [x.text for x in ins], total

WC = re.compile(r'(vmcnt|lgkmcnt)\((\d+)\)')
def check_waits(lines, entry=0, maxstates=400000):
    ins = [Ins(l) for l in lines]
    succ = build_cfg(ins)
    errs = {}
    stack = [(entry, (), ())]
    seen = set()
    n = 0
    while stack:
        j, vm, lg = stack.pop()
        while True:
            key = (j, vm, lg)
            x = ins[j]
            if x.kind == 'label':
                if key in seen: break
                seen.add(key)
            n += 1
            if n > maxstates * 50: raise RuntimeError('check_waits: too many states')
            if x.kind == 'dir' and x.text.startswith('; arrived'):
                vm = tuple((k, frozenset()) for k, d in vm)
            if x.kind not in ('dir', 'label'):
                touched = x.r | x.w
                for q, nm in ((vm, 'vm'), (lg, 'lgkm')):
                    for k, d in q:
                        if d & touched:
                            if (x.kind == 'vm' and nm == 'vm' or x.kind == 'ds' and nm == 'lgkm') and not (d & x.r): continue
                            errs[(j, k)] = f'{nm}: "{x.text.strip()}" touches result of un-waited "{ins[k].text.strip()}"'
                if x.op == 's_waitcnt':
                    for nm, v in WC.findall(x.text):
                        v = int(v)
                        if nm == 'vmcnt': vm = vm[len(vm) - v:] if v < len(vm) else vm
                        else:
                            ds = [z for z in lg if ins[z[0]].kind == 'ds']
                            keep = ds[len(ds) - v:] if v < len(ds) else ds
                            lg = tuple(z for z in lg if ins[z[0]].kind == 'smem') + tuple(keep)
                    if vm and 'vmcnt(0)' in x.text: vm = ()
                    if lg and 'lgkmcnt(0)' in x.text: lg = ()
                elif x.kind == 'vm' and not x.op.startswith(('buffer_wbl2', 'buffer_inv')):
                    vm = (vm + ((j, frozenset() if '; dup' in x.text else frozenset(x.w)),))[-63:]
                elif x.kind in ('ds', 'smem'):
                    lg = (lg + ((j, frozenset(x.w)),))[-40:]
            s = succ[j]
            if not s: break
            for k in s[1:]: stack.append((k, vm, lg))
            j = s[0]
    return list(errs.values())
```

```python
from common import *

HLDS, KBUF, QBUF, MBUF, KMB, SCR, WQB = 0, 0, 8192, 16384, 24576, 28672, 32768
OBUF = MBUF
T0, VG, WQ0, HB0, MB1, L16, KMW, KMR, IDX, OWA, PST, HG, RLD, XC, SEED, FLA = 0, 1, 2, 6, 10, 13, 14, 15, 16, 17, 18, 19, 20, 21, 22, 23
T1, T2, T3, T4 = 24, 25, 26, 27
GA, CB, SB = 122, 124, 126
WO = 128
sQ, sA, sN, sC, sPB, sRB, sGF, sFIRST, sNEG = [f's{i}' for i in range(41, 50)]
sHB = 's[50:51]'
CM = [f's[{64+2*r}:{65+2*r}]' for r in range(4)]
RX = RA


def lane_consts(g, lane, lam, grp):
    e = g.e
    e(f'v_lshlrev_b32 v{L16}, 4, v{lane}', f'v_and_b32 v{lam}, 15, v{lane}', f'v_lshrrev_b32 v{grp}, 4, v{lane}', f's_lshl_b32 s33, {sW}, 8')
    e(f'v_lshlrev_b32 v28, 15, v{lam}', f'v_lshlrev_b32 v29, 4, v{grp}', f'v_add3_u32 v{PST}, v28, v29, s33',
      f'v_lshlrev_b32 v28, 10, v{lam}', f'v_add_u32 v{HG}, v28, v29',
      f'v_lshlrev_b32 v28, 10, v{grp}', f'v_lshlrev_b32 v29, 4, v{lam}', f'v_add3_u32 v{RLD}, v28, v29, s33')
    e(f'v_lshrrev_b32 v28, 3, v{lam}', 'v_lshlrev_b32 v28, 7, v28', f'v_and_b32 v29, 3, v{lam}', 'v_lshlrev_b32 v30, 5, v29', 'v_add3_u32 v28, v28, v30, s33',
      f'v_bfe_u32 v30, v{lam}, 2, 1', 'v_lshlrev_b32 v30, 4, v30', f'v_lshlrev_b32 v31, 2, v{grp}', f'v_add3_u32 v{XC}, v28, v30, v31')
    sel_setup(g, 29, SEED, 30, 31)
    e(f'v_and_b32 v28, 31, v{lane}', f'v_lshlrev_b32 v{FLA}, 2, v28')
    e(f's_lshl_b32 s33, {sX}, 21', f's_add_u32 s33, s33, {INB2}', f's_lshl_b32 s34, {sT}, 10', f's_add_u32 {sPB}, s33, s34',
      f's_lshl_b32 s34, {sT}, 15', f's_add_u32 {sRB}, s33, s34',
      f's_lshl_b32 s33, {sX}, 9', f's_lshl_b32 s34, {sW}, 7', 's_add_u32 s33, s33, s34', f's_add_u32 {sGF}, s33, {GFLAG}', f's_mov_b32 {sN}, 0')


def gather_rows(g, sbase):
    e = g.e
    e(f's_lshl_b32 s34, {sW}, 8', f's_add_u32 s34, s34, {sbase}', f's_lshl_b32 s35, {sW}, 13')
    for k in range(4):
        for tt in range(2):
            e(f's_add_u32 s36, s34, {tt*16384 + k*64}', f's_add_u32 m0, s35, {HLDS + (k*2 + tt)*1024}',
              f'buffer_load_dwordx4 v{HG}, {WS}, s36 offen sc1 lds')


def proj_out(g, wfrag, nk, OF, ACC, PK, sc):
    e = g.e
    blocks = [(tt, half) for tt in range(2) for half in range(2)]
    pend = []
    e(f's_add_u32 s36, {sPB}, {16*32768}')
    for b, (tt, half) in enumerate(blocks):
        A = ACC + 16 * (b % 2)
        mf = [mf32(A + 4*x, wfrag(4*half + x, k), OF + 4*(tt*nk + k), A + 4*x if k else None) for k in range(nk) for x in range(4)]
        per = -(-len(pend) // max(len(mf) - 2, 1))
        for i, m in enumerate(mf):
            e(m)
            if i >= 2: e(*pend[:per]); pend = pend[per:]
        e(*pend)
        P = PK + 8 * (b % 2)
        pend = []
        for part in range(2):
            pend += [cvt(P + 4*part + 2*(r % 2) + xp, A + 8*xp + r, A + 8*xp + 4 + r) for r in (2*part, 2*part + 1) for xp in range(2)]
            pend += [f'buffer_store_dwordx4 {vr(P + 4*part, 4)}, v{PST}, {WS}, {"s36" if tt else sPB} offen offset:{half*128 + part*64}{sc}']
    e(*pend)


def signal_group(g, sc):
    e = g.e
    e(f's_add_u32 {sN}, {sN}, 1', f's_lshl_b32 s33, {sT}, 2', f's_add_u32 s33, s33, {sGF}', f'v_mov_b32 v{T0}, {sN}', 's_waitcnt vmcnt(0)',
      's_mov_b64 exec, 1', f'buffer_store_dword v{T0}, off, {WS}, s33{sc}', 's_mov_b64 exec, -1')


def reduce_row(g, tag, nld, R, SEL, RD_, last=None, extra=()):
    e = g.e
    l = g.lab(tag + 'GP'); ok = g.lab(tag + 'GPOK')
    e(*sel_build(SEL, SEED), f'{l}:', f'buffer_load_dword v{T0}, v{FLA}, {WS}, {sGF} offen sc1', 's_waitcnt vmcnt(0)',
      f'v_cmp_gt_u32 vcc, {sN}, v{T0}', f's_cbranch_vccz {ok}')
    g.retry(l, 1)
    e(f'{ok}:', *extra)
    for i in range(nld):
        a = last if (last is not None and i == nld - 1) else RLD
        if i: e(f's_add_u32 s36, {sRB}, {i*4096}')
        e(f'buffer_load_dwordx4 {vr(R + 4*i, 4)}, v{a}, {WS}, {"s36" if i else sRB} offen sc1')
    for i in range(nld):
        e(f's_waitcnt vmcnt({nld - 1 - i})', mf32(RD_, SEL, R + 4*i, RD_ if i else None))
    e(f's_xor_b32 {sPB}, {sPB}, 0x100000', f's_xor_b32 {sRB}, {sRB}, 0x100000')


def att_setup(g):
    e = g.e
    lane, lam, grp = T4, T3, T2
    e(f'v_mov_b32 v{lane}, v0')
    g.srd(RX, P_X, 2 * MB)
    lane_consts(g, lane, lam, grp)
    e(f's_lshl_b32 s33, {sW}, 11', f'v_add_u32 v{VG}, s33, v{L16}')
    for p in range(4):
        e(f's_add_u32 s33, {sW}, {p}', 's_and_b32 s33, s33, 3', 's_lshl_b32 s34, s33, 13', f'v_add_u32 v{HB0+p}, s34, v{L16}')
        if p: e('s_lshl_b32 s34, s33, 11', f'v_add_u32 v{MB1+p-1}, s34, v{L16}')
        e('s_lshl_b32 s33, s33, 15', f's_lshl_b32 s34, {sW}, 12', 's_add_u32 s33, s33, s34', f's_add_u32 s33, s33, {WQB}', f'v_add_u32 v{WQ0+p}, s33, v{L16}')
    e(f'v_lshrrev_b32 v28, 2, v{lam}', f'v_xor_b32 v29, v{grp}, v28', 'v_lshlrev_b32 v29, 3, v29', f'v_lshlrev_b32 v30, 5, v{lam}',
      f's_lshl_b32 s33, {sW}, 10', f's_add_u32 s33, s33, {KMB}', f'v_add3_u32 v{KMW}, v29, v30, s33',
      f'v_lshlrev_b32 v29, 2, v{grp}', 'v_add_u32 v29, v29, v28', 'v_lshlrev_b32 v29, 5, v29', f'v_and_b32 v30, 3, v{lam}', f'v_xor_b32 v31, v30, v{grp}',
      'v_lshlrev_b32 v31, 3, v31', f's_mov_b32 s33, {KMB}', f'v_add3_u32 v{KMR}, v29, v31, s33',
      'v_mov_b32 v28, 0x44444444', 'v_mov_b32 v29, 0xeeeeeeee', 'v_cmp_lt_u32 vcc, 1, v30', f'v_cndmask_b32 v{IDX}, v28, v29, vcc')
    e(f'v_lshlrev_b32 v28, 9, v{grp}', f'v_lshlrev_b32 v29, 4, v{lam}', f's_lshr_b32 s33, {sW}, 1', 's_lshl_b32 s33, s33, 11', f's_and_b32 s34, {sW}, 1',
      's_lshl_b32 s34, s34, 2', 's_add_u32 s33, s33, s34', f's_add_u32 s33, s33, {OBUF}', f'v_add3_u32 v{OWA}, v28, v29, s33')
    for r in range(4):
        e(f'v_lshlrev_b32 v28, 2, v{grp}', f'v_add_u32 v28, {r}, v28', f'v_cmp_ge_u32 {CM[r]}, v{lam}, v28')
    e(f's_sub_u32 {sQ}, {sX}, 1', f's_mov_b32 {sA}, {sQ}', f's_mov_b32 {sC}, 0x3e0293ee', f's_mov_b32 {sFIRST}, 1', f's_mov_b32 {sNEG}, 0xf149f2ca',
      f's_mov_b64 {sHB}, 0')


def qkv(g, L):
    e = g.e
    ACC = 28; OP = 76
    e(f's_bitcmp1_b64 {sHB}, {sQ}', f's_cbranch_scc1 {L("HOK")}', f'{L("HP")}:',
      f'buffer_load_dwordx2 v[24:25], off, {DBG}, 0 offset:{DB_HBITS*4} sc1', 's_waitcnt vmcnt(0)', 'v_readfirstlane_b32 s50, v24', 'v_readfirstlane_b32 s51, v25',
      f's_bitcmp1_b64 {sHB}, {sQ}', f's_cbranch_scc1 {L("HOK")}')
    g.retry(L('HP'), 2)
    e(f'{L("HOK")}:', 's_barrier', f's_lshl_b32 s33, {sQ}, 15', f's_add_u32 s33, s33, {HBUF}')
    gather_rows(g, 's33')
    def reads(st):
        i, jj = st // 2, st % 2
        b = OP + 16 * (st % 2)
        return [f'ds_read_b128 {vr(b + 8 + 4*t, 4)}, v{WQ0 + i//2} offset:{(i%2)*16384 + t*2048 + jj*1024}' for t in range(2)] + \
               [f'ds_read_b128 {vr(b + 4*tt, 4)}, v{HB0 + i//2} offset:{HLDS + (i%2)*4096 + jj*2048 + tt*1024}' for tt in range(2)]
    e(*reads(0)[:2], 's_waitcnt vmcnt(0)', 's_barrier', *reads(0)[2:])
    for st in range(16):
        i, jj = st // 2, st % 2
        b = OP + 16 * (st % 2)
        nxt = reads(st + 1) if st < 15 else []
        e('s_waitcnt lgkmcnt(0)')
        mf = []
        for t in range(2):
            for tt in range(2):
                d = ACC + (t*2 + tt)*4
                mf.append(mf32(d, ar((i*2 + t)*8 + jj*4, 4), b + 4*tt, d if st else None))
        for t in range(2):
            for tt in range(2):
                d = ACC + 32 + (t*2 + tt)*4
                mf.append(mf32(d, b + 4*tt, ar(128 + (i*2 + t)*8 + jj*4, 4), d if st else None))
        for t in range(2):
            for tt in range(2):
                d = ACC + 16 + (t*2 + tt)*4
                mf.append(mf32(d, b + 8 + 4*t, b + 4*tt, d if st else None))
        for n, m in enumerate(mf):
            e(m)
            if n < len(nxt): e(nxt[n])
    e(f's_lshl_b32 s33, {sQ}, 18', f's_lshl_b32 s34, {sT}, 13', 's_add_u32 s33, s33, s34', f's_add_u32 s34, s33, {KX}', f's_add_u32 s35, s33, {VX}', f's_add_u32 s36, s33, {QX}')
    PK = OP
    for nm, base, so in (('k', 0, 's34'), ('v', 32, 's35'), ('q', 16, 's36')):
        for o in range(2):
            P = PK + base // 2 + 4*o
            for h in range(2):
                d = ACC + base + ((o*2 + h) if nm == 'v' else (h*2 + o)) * 4
                e(cvt(P + 2*h, d, d + 1), cvt(P + 2*h + 1, d + 2, d + 3))
            e(f'buffer_store_dwordx4 {vr(P,4)}, v{VG}, {WS}, {so} offen offset:{o*1024}' + ('' if nm == 'q' else ' sc1'))
    e(f's_lshl_b32 s33, {sT}, 10', f's_lshl_b32 s34, {sQ}, 4', 's_add_u32 s33, s33, s34', f's_lshl_b32 s34, {sW}, 2', 's_add_u32 s33, s33, s34',
      f's_add_u32 s33, s33, {KVFLAG}', f'v_mov_b32 v{T0}, 1', f's_add_u32 {sQ}, {sQ}, {NATT}', 's_waitcnt vmcnt(2)',
      's_mov_b64 exec, 1', f'buffer_store_dword v{T0}, off, {WS}, s33 sc1', 's_mov_b64 exec, -1')


def attention(g, L, sc):
    e = g.e
    VXR, X00, X01, X11, SM0, SM1 = 28, 36, 40, 44, 48, 52
    KF, QF = 56, 88
    e('s_waitcnt vmcnt(0)', 's_barrier',
      f's_lshl_b32 s33, {sA}, 18', f's_lshl_b32 s34, {sT}, 13', 's_add_u32 s33, s33, s34', f's_lshl_b32 s37, {sW}, 11')
    for base, lds in ((KX, KBUF), (QX, QBUF)):
        e(f's_add_u32 s34, s33, {base}', f's_add_u32 m0, s37, {lds}', f'buffer_load_dwordx4 v{VG}, {WS}, s34 offen sc1 lds',
          f'buffer_load_dwordx4 v{VG}, {WS}, s34 offen offset:1024 sc1 lds')
    e(f's_add_u32 s34, s33, {VX}', f'buffer_load_dwordx4 {vr(VXR,4)}, v{VG}, {WS}, s34 offen sc1', f'buffer_load_dwordx4 {vr(VXR+4,4)}, v{VG}, {WS}, s34 offen offset:1024 sc1',
      's_waitcnt vmcnt(2)', 's_barrier')
    for j in range(4):
        e(*[f'ds_read_b128 {vr(F + 8*j + 4*tt, 4)}, v{L16} offset:{B + j*2048 + tt*1024}' for F, B in ((KF, KBUF), (QF, QBUF)) for tt in range(2)])
    for j in range(4):
        e(f's_waitcnt lgkmcnt({12 - 4*j})', mf32(X00, KF + 8*j, QF + 8*j, X00 if j else None), mf32(X01, KF + 8*j, QF + 8*j + 4, X01 if j else None),
          mf32(X11, KF + 8*j + 4, QF + 8*j + 4, X11 if j else None))
    M = 56; K0, K1, V0, V1 = 88, 92, 96, 100
    e(f's_lshl_b32 s38, {sA}, 13', f's_add_u32 s38, s38, {MHIST}', f's_cmp_eq_u32 {sA}, 0', f's_cbranch_scc1 {L("MP")}',
      f's_sub_u32 s33, s38, 8192', f's_add_u32 s33, s33, s37',
      f'{L("LP")}:', f'buffer_load_dword v{T0}, off, {WS}, s33 sc1', 's_waitcnt vmcnt(0)', f'v_cmp_ne_u32 vcc, -1, v{T0}', f's_cbranch_vccnz {L("MP")}')
    g.retry(L('LP'), 8)
    e(f'{L("MP")}:', f'buffer_load_dwordx4 {vr(M,4)}, v{VG}, {WS}, s38 offen sc1', f'buffer_load_dwordx4 {vr(M+4,4)}, v{VG}, {WS}, s38 offen offset:1024 sc1',
      's_waitcnt vmcnt(0)',
      f'v_max3_u32 v{T0}, v{M}, v{M+1}, v{M+2}', f'v_max3_u32 v{T1}, v{M+3}, v{M+4}, v{M+5}', f'v_max_u32 v{T0}, v{T0}, v{M+6}',
      f'v_max3_u32 v{T0}, v{T0}, v{T1}, v{M+7}', f'v_cmp_eq_u32 vcc, -1, v{T0}', f's_cbranch_vccz {L("MOK")}')
    g.retry(L('MP'), g.opt.get('a_msleep', 2))
    e(f'{L("MOK")}:', f'ds_write_b128 v{VG}, {vr(M,4)} offset:{MBUF}', f'ds_write_b128 v{VG}, {vr(M+4,4)} offset:{MBUF+1024}', *zero(K0, 16))
    e(f'v_mov_b32 v{T1}, {sNEG}')
    for r in range(4): e(f'v_cndmask_b32 v{X00+r}, v{T1}, v{X00+r}, {CM[r]}', f'v_cndmask_b32 v{X11+r}, v{T1}, v{X11+r}, {CM[r]}')
    e('s_waitcnt lgkmcnt(0)', 's_barrier')
    e(*[f'ds_read_b128 {vr(M + 4*i, 4)}, v{MB1 + i//2 - 1} offset:{MBUF + (i%2)*1024}' for i in range(2, 8)])
    wk = lambda i, t: ar((i*2 + t)*8, 8)
    wv = lambda i, t: ar(128 + (i*2 + t)*8, 8)
    for i in range(8):
        if i >= 2: e(f's_waitcnt lgkmcnt({7 - i})')
        e(smf(K0, M + 4*i, wk(i, 0), IDX), smf(K1, M + 4*i, wk(i, 1), IDX))
    for i in range(8):
        e(smf(V0, M + 4*i, wv(i, 0), IDX), smf(V1, M + 4*i, wv(i, 1), IDX))
        if i == 1: e(f'v_add_f32 v{K0}, v{K0}, v{K0+2}', f'v_add_f32 v{K0+1}, v{K0+1}, v{K0+3}')
        if i == 2: e(f'v_add_f32 v{K1}, v{K1}, v{K1+2}', f'v_add_f32 v{K1+1}, v{K1+1}, v{K1+3}')
        if i == 3: e(cvt(K0, K0, K0+1), cvt(K1, K1, K1+1))
        if i == 4: e(f'ds_write_b32 v{KMW}, v{K0}', f'ds_write_b32 v{KMW}, v{K1} offset:512')
    QF = 56; KM = 104; VM = 96
    e('s_waitcnt lgkmcnt(0)', 's_barrier')
    for j in range(4):
        e(*[f'ds_read_b64_tr_b16 {vr(KM + 4*j + 2*u, 2)}, v{KMR} offset:{j*1024 + u*512}' for u in range(2)],
          *[f'ds_read_b128 {vr(QF + 8*j + 4*tt, 4)}, v{L16} offset:{QBUF + j*2048 + tt*1024}' for tt in range(2)])
    e(f'v_add_f32 v{V0}, v{V0}, v{V0+2}', f'v_add_f32 v{V0+1}, v{V0+1}, v{V0+3}', f'v_add_f32 v{V1}, v{V1}, v{V1+2}', f'v_add_f32 v{V1+1}, v{V1+1}, v{V1+3}',
      cvt(VM, V0, V0+1), cvt(VM+1, V1, V1+1), *zero(VM+2, 2))
    for j in range(4):
        e(f's_waitcnt lgkmcnt({12 - 4*j})', mf32(SM0, KM + 4*j, QF + 8*j, SM0 if j else None), mf32(SM1, KM + 4*j, QF + 8*j + 4, SM1 if j else None))
    P0, P1, PA0, PB0, PA1, PB1, ONES, SUM0, SUM1, O = 56, 60, 64, 68, 72, 76, 80, 84, 88, 104
    e(f'v_max3_f32 v{T0}, v{X00}, v{X00+1}, v{X00+2}', f'v_max3_f32 v{T1}, v{X01}, v{X01+1}, v{X01+2}', f'v_max3_f32 v{T2}, v{X01+3}, v{X11}, v{X11+1}',
      f'v_max3_f32 v{T1}, v{T1}, v{X11+2}, v{X11+3}', f'v_max_f32 v{T0}, v{T0}, v{X00+3}', f'v_max_f32 v{T1}, v{T1}, v{T2}',
      *zero(P0+2, 2), *zero(PA0, 16), f'v_mov_b32 v{ONES}, 0x3f803f80', f'v_mov_b32 v{ONES+1}, 0x3f803f80', f'v_mov_b64 {vr(ONES+2,2)}, {vr(ONES,2)}',
      f'v_max3_f32 v{T0}, v{T0}, v{SM0}, v{SM0+1}', f'v_max3_f32 v{T1}, v{T1}, v{SM1}, v{SM1+1}',
      *cross_rows('v_max_f32', [T0, T1], [T2, T3]), f'v_mul_f32 v{T0}, {sC}, v{T0}', f'v_mul_f32 v{T1}, {sC}, v{T1}')
    q0 = [X00+r for r in range(4)] + [SM0, SM0+1]
    q1 = [X01+r for r in range(4)] + [X11+r for r in range(4)] + [SM1, SM1+1]
    for regs, t in ((q0, T0), (q1, T1)): e(*[f'v_fma_f32 v{r}, v{r}, {sC}, -v{t}' for r in regs])
    e(*[f'v_exp_f32 v{r}, v{r}' for r in q0 + q1])
    e(cvt(P0, X00, X00+1), cvt(P0+1, X00+2, X00+3), cvt(PA0, SM0, SM0+1), cvt(PB0+1, SM0, SM0+1),
      cvt(P1, X01, X01+1), cvt(P1+1, X01+2, X01+3), cvt(P1+2, X11, X11+1), cvt(P1+3, X11+2, X11+3), cvt(PA1, SM1, SM1+1), cvt(PB1+1, SM1, SM1+1))
    e(mf32(SUM0, ONES, P0, None), mf32(SUM1, ONES, P1, None), mf32(SUM0, ONES, PA0, SUM0), mf32(SUM1, ONES, PA1, SUM1))
    for tt, (P, PA, PB) in enumerate(((P0, PA0, PB0), (P1, PA1, PB1))):
        e(mf32(O + 8*tt, VXR, P, None), mf32(O + 8*tt + 4, VXR + 4, P, None), mf32(O + 8*tt, VM, PA, O + 8*tt), mf32(O + 8*tt + 4, VM, PB, O + 8*tt + 4))
        if tt == 0: e(f'v_rcp_f32 v{T0}, v{SUM0}', f'v_rcp_f32 v{T1}, v{SUM1}')
    for tt in range(2):
        for t in range(2):
            o = O + 8*tt + 4*t
            e(*[f'v_mul_f32 v{o+r}, v{o+r}, v{(T0, T1)[tt]}' for r in range(4)], cvt(o, o, o+1), cvt(o+1, o+2, o+3),
              f'ds_write_b32 v{OWA}, v{o} offset:{tt*4096 + t*256}', f'ds_write_b32 v{OWA}, v{o+1} offset:{tt*4096 + t*256 + 8}')
    OF = 56
    e('s_waitcnt lgkmcnt(0)', 's_barrier', *[f'ds_read_b128 {vr(OF + 4*n, 4)}, v{L16} offset:{OBUF + n*1024}' for n in range(8)], 's_waitcnt lgkmcnt(0)')
    g.dump('ao', [f'v{i}' for i in range(1, 128)], L16, T0)
    proj_out(g, lambda d, k: WO + (d*2 + k//2)*8 + (k % 2)*4, 4, OF, 88, 28, sc)
    XR = 96; RD_ = 92
    e(f's_lshl_b32 s37, {sA}, 5', f's_add_u32 s37, s37, {sT}', 's_lshl_b32 s38, s37, 10', f'buffer_load_dword v{XR}, v{XC}, {RX}, s38 offen')
    signal_group(g, sc)
    reduce_row(g, 'A', 8, 56, 88, RD_)
    a, b = RD_, RD_ + 1
    X1P = 98; MEAN = 100; M2 = 101; C = 104
    e(*unpack(XR, XR+1, XR), *rnd2(a, b, T0), f'v_mul_f32 v{a}, v{a}, v{GA}', f'v_mul_f32 v{b}, v{b}, v{GA+1}', *rnd2(a, b, T0),
      f'v_add_f32 v{a}, v{a}, v{XR}', f'v_add_f32 v{b}, v{b}, v{XR+1}', cvt(X1P, a, b), *unpack(a, b, X1P),
      f's_add_u32 s34, s38, {X1BUF}', f'buffer_store_dword v{X1P}, v{XC}, {WS}, s34 offen sc1',
      f'v_add_f32 v{MEAN}, v{a}, v{b}', *wave_sum([MEAN], [T0]), f'v_mul_f32 v{MEAN}, 0x3c000000, v{MEAN}',
      f'v_sub_f32 v{T1}, v{a}, v{MEAN}', f'v_sub_f32 v{T2}, v{b}, v{MEAN}', f'v_mul_f32 v{M2}, v{T1}, v{T1}', f'v_fmac_f32 v{M2}, v{T2}, v{T2}',
      *wave_sum([M2], [T0]), f's_lshl_b32 s33, {sW}, 3', f's_add_u32 s33, s33, {SCR}', f'v_mov_b32 v{T0}, s33', f'v_mov_b32 v{T1}, {SCR}',
      's_mov_b64 exec, 1', f'ds_write_b64 v{T0}, {vr(MEAN,2)}', 's_mov_b64 exec, -1', 's_waitcnt lgkmcnt(0)', 's_barrier',
      f'ds_read_b128 {vr(C,4)}, v{T1}', f'ds_read_b128 {vr(C+4,4)}, v{T1} offset:16', 's_waitcnt lgkmcnt(0)',
      f'v_add_f32 v{MEAN}, v{C}, v{C+2}', f'v_add_f32 v{T0}, v{C+4}, v{C+6}', f'v_add_f32 v{MEAN}, v{MEAN}, v{T0}', f'v_mul_f32 v{MEAN}, 0x3e800000, v{MEAN}',
      f'v_add_f32 v{M2}, v{C+1}, v{C+3}', f'v_add_f32 v{T0}, v{C+5}, v{C+7}', f'v_add_f32 v{M2}, v{M2}, v{T0}')
    e(*[f'v_sub_f32 v{C+2*k}, v{C+2*k}, v{MEAN}' for k in range(4)], f'v_mul_f32 v{T0}, v{C}, v{C}', *[f'v_fmac_f32 v{T0}, v{C+2*k}, v{C+2*k}' for k in (1, 2, 3)],
      f'v_fmac_f32 v{M2}, 0x43000000, v{T0}')
    e(*ln_finish(a, b, MEAN, M2, T0), f'v_sub_f32 v{a}, v{a}, v{MEAN}', f'v_sub_f32 v{b}, v{b}, v{MEAN}', *rnd2(a, b, T0),
      f'v_mul_f32 v{a}, v{a}, v{M2}', f'v_mul_f32 v{b}, v{b}, v{M2}', *rnd2(a, b, T0), f'v_mul_f32 v{a}, v{a}, v{CB}', f'v_mul_f32 v{b}, v{b}, v{CB+1}', *rnd2(a, b, T0),
      f'v_add_f32 v{a}, v{a}, v{SB}', f'v_add_f32 v{b}, v{b}, v{SB+1}', cvt(a, a, b),
      f's_add_u32 s34, s38, {H2BUF}', f'buffer_store_dword v{a}, v{XC}, {WS}, s34 offen sc1',
      's_lshl_b32 s37, s37, 4', f's_lshl_b32 s33, {sW}, 2', 's_add_u32 s33, s33, s37', f's_add_u32 s33, s33, {H2FLAG}', f'v_mov_b32 v{T0}, 1',
      f's_add_u32 {sA}, {sA}, {NATT}', 's_waitcnt vmcnt(0)', 's_mov_b64 exec, 1', f'buffer_store_dword v{T0}, off, {WS}, s33 sc1', 's_mov_b64 exec, -1')


def att_loop(g, mode):
    e = g.e
    sc = ' sc1' if mode == 'S' else ''
    L = lambda n: f'A{mode}_{n}'
    e(f'{L("LOOP")}:', f's_cmp_ge_u32 {sQ}, 64', f's_cbranch_scc1 {L("ATT")}')
    qkv(g, L)
    e(f's_cmp_eq_u32 {sFIRST}, 0', f's_cbranch_scc1 {L("ATT")}', f's_mov_b32 {sFIRST}, 0', f'v_lshlrev_b32 v{T1}, 1, v{XC}')
    for r, k in ((GA, 2), (CB, 4), (SB, 3)):
        e(f's_mov_b32 s33, {MOD + k*2048}', f'buffer_load_dwordx2 {vr(r,2)}, v{T1}, {WS}, s33 offen sc1')
    e('s_waitcnt vmcnt(0)', f's_branch {L("LOOP")}', f'{L("ATT")}:')
    attention(g, L, sc)
    e(f's_cmp_lt_u32 {sA}, 64', f's_cbranch_scc1 {L("LOOP")}', 's_waitcnt vmcnt(0)', 's_endpgm')


def att_role(g):
    e = g.e
    att_setup(g)
    g.wait_ready(T4, T1, T2)
    e(f's_cmp_lg_u32 {sMODE}, 0', 's_cbranch_scc1 AS_LOOP')
    att_loop(g, 'F')
    att_loop(g, 'S')
```

```python
from layout import *

NAME = "adaLN_cond__memory_aug_recurrent_mem_tr__glu_gated_swiglu__prompt_kernel"

sW, sX, sT, sBUD, sMODE = 's3', 's4', 's5', 's6', 's7'
WS = 's[8:11]'
DBG = 's[12:15]'
RA = 's[16:19]'; RB = 's[20:23]'; RC = 's[24:27]'; RD = 's[28:31]'
sOVF = 's32'
P_X, P_MEM0, P_WQ, P_WK, P_WV, P_WO, P_SEG, P_BX, P_W1, P_W3, P_W2, P_C, P_WMOD, P_OUT, P_DBG, P_WS = [64 + 2 * i for i in range(16)]


def vr(a, n=1):
    return f'v{a}' if n == 1 else f'v[{a}:{a + n - 1}]'


def ar(a, n=1):
    return f'a{a}' if n == 1 else f'a[{a}:{a + n - 1}]'


class Gen:
    def __init__(self, opt):
        self.L = []
        self.opt = opt
        self.uid = 0
        self.tail = []

    def e(self, *lines):
        for s in lines:
            for l in s.split('\n'):
                l = l.strip()
                if l: self.L.append(l)

    def lab(self, p):
        self.uid += 1
        return f'{p}_{self.uid}'

    def srd(self, r, ptr, nbytes):
        b = int(r[2:r.index(':')])
        self.e(f's_mov_b32 s{b}, s{ptr}', f's_mov_b32 s{b+1}, s{ptr+1}', f's_mov_b32 s{b+2}, {nbytes}', f's_mov_b32 s{b+3}, 0x00020000')

    def retry(self, label, sleep=0):
        if sleep: self.e(f's_sleep {sleep}')
        self.e(f's_sub_u32 {sBUD}, {sBUD}, 1', 's_cbranch_scc1 GIVEUP', f's_branch {label}')

    def stamp(self, idx_sreg_or_int, slot, tmpv, tmps='s[62:63]'):
        if not self.opt.get('stamps'): return
        lo = tmps[2:tmps.index(':')]
        self.e(f's_memtime {tmps}', 's_waitcnt lgkmcnt(0)', f'v_mov_b32 v{tmpv}, s{lo}')
        if isinstance(idx_sreg_or_int, int):
            self.e(f's_add_u32 s{lo}, s61, {(idx_sreg_or_int * 8 + slot) * 4}')
        else:
            self.e(f's_lshl_b32 s{lo}, {idx_sreg_or_int}, 5', f's_add_u32 s{lo}, s{lo}, s61', f's_add_u32 s{lo}, s{lo}, {slot * 4}')
        self.e(f'buffer_store_dword v{tmpv}, off, {WS}, s{lo}')

    def dump(self, name, regs, l16, tmp):
        if self.opt.get('dump') != name: return
        e = self.e
        e('s_nop 15', 's_waitcnt vmcnt(0) lgkmcnt(0)', f's_lshl_b32 s33, {sX}, 5', f's_add_u32 s33, s33, {sT}', 's_lshl_b32 s33, s33, 19',
          f's_lshl_b32 s34, {sW}, 17', 's_add_u32 s33, s33, s34', f's_add_u32 s33, s33, {DUMP}',
          f'v_mbcnt_lo_u32_b32 v{tmp}, -1, 0', f'v_mbcnt_hi_u32_b32 v{tmp}, -1, v{tmp}', f'v_lshlrev_b32 v{tmp}, 2, v{tmp}')
        for n, r in enumerate(regs):
            e(f'buffer_store_dword {r}, v{tmp}, {WS}, s33 offen', 's_add_u32 s33, s33, 256')
        e('s_waitcnt vmcnt(0)', 's_endpgm')

    def prologue(self):
        e = self.e
        opt = self.opt
        e('s_cmp_ge_u32 s2, 256', 's_cbranch_scc1 GIVEUP')
        e('s_load_dwordx16 s[64:79], s[0:1], 0', 's_load_dwordx16 s[80:95], s[0:1], 64')
        e(f's_getreg_b32 {sX}, hwreg(HW_REG_XCC_ID,0,4)')
        e('v_lshrrev_b32 v1, 6, v0', 'v_and_b32 v0, 63, v0', f'v_readfirstlane_b32 {sW}, v1')
        e(f's_and_b32 {sX}, {sX}, 7', f's_mov_b32 {sBUD}, {opt.get("budget", 400000)}', f's_mov_b32 {sOVF}, 0')
        if opt.get('fake_xcc'):
            e(f's_lshr_b32 {sX}, s2, 6', f's_lshl_b32 {sX}, {sX}, 1')
        e('s_waitcnt lgkmcnt(0)')
        self.srd(WS, P_WS, WS_BYTES)
        self.srd(DBG, P_DBG, 256)
        scope = ' sc1' if opt.get('fake_xcc') else ''
        e(f's_cmp_lg_u32 {sW}, 0', 's_cbranch_scc1 TICKET_WAIT')
        e('v_mov_b32 v2, 1', f's_lshl_b32 s33, {sX}, 2', 's_mov_b64 exec, 1',
          f'buffer_atomic_add v2, off, {DBG}, s33 sc0{scope}', 'v_mov_b32 v3, 0', 's_waitcnt vmcnt(0)',
          'ds_write_b32 v3, v2', 's_mov_b64 exec, -1', 's_waitcnt lgkmcnt(0)')
        e('TICKET_WAIT:', 's_barrier', 'v_mov_b32 v3, 0', 'ds_read_b32 v2, v3', 's_waitcnt lgkmcnt(0)',
          f'v_readfirstlane_b32 {sT}, v2', f's_cmp_ge_u32 {sT}, 32', 's_cbranch_scc1 OVERFLOW', 'ROLE_KNOWN:')
        e(f's_lshl_b32 s33, {sX}, 5', f's_add_u32 s33, s33, {sT}')
        if opt.get('stamps'):
            e(f's_lshl_b32 s61, s33, 14', f's_lshl_b32 s34, {sW}, 12', 's_add_u32 s61, s61, s34', f's_add_u32 s61, s61, {STAMP}')
        e('v_mov_b32 v2, -1', 'v_mov_b32 v3, -1', 'v_lshlrev_b32 v4, 3, v0', f's_lshl_b32 s34, s33, 11', f's_lshl_b32 s35, {sW}, 9',
          's_add_u32 s34, s34, s35', f's_add_u32 s34, s34, {MHIST}', f'buffer_store_dwordx2 v[2:3], v4, {WS}, s34 offen sc1')
        if not opt.get('keep_flags'):
            e('v_mov_b32 v6, 0', 'v_mov_b32 v7, 0', f's_lshl_b32 s34, s33, 9', f's_add_u32 s34, s34, {FLAGS}',
              f's_cmp_lg_u32 {sW}, 0', 's_cbranch_scc1 FLAGS_DONE', f'buffer_store_dwordx2 v[6:7], v4, {WS}, s34 offen sc1', 'FLAGS_DONE:')
        t = []
        a = t.append
        a('OVERFLOW:'); a('s_barrier'); a(f's_cmp_lg_u32 {sW}, 0'); a('s_cbranch_scc1 OVF_WAIT')
        a('v_mov_b32 v2, 1'); a('s_mov_b64 exec, 1'); a(f'buffer_atomic_add v2, off, {DBG}, 0 offset:{DB_OVF*4} sc0 sc1')
        a('s_waitcnt vmcnt(0)'); a('v_readfirstlane_b32 s34, v2'); a('s_mov_b64 exec, -1'); a('v_lshlrev_b32 v4, 2, v0')
        a('OVF_POLL:'); a(f'buffer_load_dword v2, v4, {DBG}, 0 offen offset:128 sc1'); a('s_waitcnt vmcnt(0)')
        a(f'v_readlane_b32 s35, v2, {DB_OVF-32}')
        for x in range(8):
            a(f'v_readlane_b32 s{40+x}, v2, {DB_CNTG-32+x}')
        for x in range(8):
            a(f's_add_u32 s35, s35, s{40+x}')
        a('s_cmp_eq_u32 s35, 256'); a('s_cbranch_scc1 OVF_PICK'); a('s_sleep 8')
        a(f's_sub_u32 {sBUD}, {sBUD}, 1'); a('s_cbranch_scc1 GIVEUP'); a('s_branch OVF_POLL')
        a('OVF_PICK:')
        for x in range(8):
            a(f's_sub_u32 s35, 32, s{40+x}'); a(f's_add_u32 s36, s{40+x}, s34'); a(f's_add_u32 s36, s36, {x*32}')
            a('s_cmp_lt_u32 s34, s35'); a('s_cbranch_scc1 OVF_FOUND'); a('s_sub_u32 s34, s34, s35')
        a('s_branch GIVEUP')
        a('OVF_FOUND:'); a('v_mov_b32 v2, s36'); a('v_mov_b32 v3, 0'); a('ds_write_b32 v3, v2'); a('s_waitcnt lgkmcnt(0)')
        a('OVF_WAIT:'); a('s_barrier'); a('v_mov_b32 v3, 0'); a('ds_read_b32 v2, v3'); a('s_waitcnt lgkmcnt(0)')
        a(f'v_readfirstlane_b32 {sT}, v2'); a(f's_lshr_b32 {sX}, {sT}, 5'); a(f's_and_b32 {sT}, {sT}, 31')
        a(f's_mov_b32 {sOVF}, 1'); a('s_branch ROLE_KNOWN')
        self.tail += t

    def signal_ready(self, tv):
        l = self.lab('SIG')
        self.e(f's_cmp_lg_u32 {sW}, 0', f's_cbranch_scc1 {l}',
               f's_lshl_b32 s33, {sX}, 2', f's_add_u32 s33, s33, {DB_CNTG*4}', f's_cmp_eq_u32 {sOVF}, 0',
               f's_cselect_b32 s33, s33, {DB_CNTO*4}', f'v_mov_b32 v{tv}, 1', 's_mov_b64 exec, 1',
               f'buffer_atomic_add v{tv}, off, {DBG}, s33 sc1', 's_mov_b64 exec, -1', f'{l}:')

    def wait_ready(self, vlane, t0, t1):
        e = self.e
        l = self.lab('RDY'); ok = self.lab('RDYOK')
        e(f'v_lshlrev_b32 v{t1}, 2, v{vlane}', f'{l}:', f'buffer_load_dword v{t0}, v{t1}, {DBG}, 0 offen offset:128 sc1', 's_waitcnt vmcnt(0)',
          f'v_readlane_b32 {sMODE}, v{t0}, {DB_OVF-32}', f'v_readlane_b32 s33, v{t0}, {DB_CNTO-32}')
        for x in range(8):
            e(f'v_readlane_b32 s34, v{t0}, {DB_CNTG-32+x}', 's_add_u32 s33, s33, s34')
        e(f's_cmp_ge_u32 s33, {self.opt.get("nready", 256)}', f's_cbranch_scc1 {ok}')
        self.retry(l, 4)
        e(f'{ok}:')
        if self.opt.get('force_safe'): e(f's_mov_b32 {sMODE}, 1')

    def load_attn_weights(self, tag):
        e = self.e
        QB = 32768
        self.srd(RA, P_WO, 4 * MB); self.srd(RB, P_WK, 4 * MB); self.srd(RC, P_WV, 4 * MB); self.srd(RD, P_WQ, 4 * MB)
        vO, vD0, vD1, vT = 1, 2, 3, 4
        vWB = 8
        e('v_bfe_u32 v10, v0, 4, 1', 'v_lshlrev_b32 v10, 14, v10', 'v_lshrrev_b32 v11, 5, v0', 'v_lshlrev_b32 v11, 12, v11',
          'v_and_b32 v12, 15, v0', 'v_lshlrev_b32 v13, 3, v12', f's_lshl_b32 s33, {sW}, 8', 'v_add3_u32 v10, v10, v11, v13', f'v_add_u32 v{vO}, s33, v10')
        e('v_lshrrev_b32 v10, 4, v0', 'v_lshrrev_b32 v11, 1, v12', 'v_xor_b32 v11, v11, v10', 'v_lshlrev_b32 v11, 5, v11',
          'v_and_b32 v13, 1, v0', 'v_lshlrev_b32 v13, 4, v13', 'v_lshlrev_b32 v10, 13, v10', 'v_add3_u32 v10, v10, v11, v13',
          f's_lshl_b32 s33, {sW}, 17', f'v_add_u32 v{vD0}, s33, v10', f'v_xor_b32 v{vD1}, 0x80, v{vD0}')
        e('v_bfe_u32 v10, v0, 2, 2', 'v_lshrrev_b32 v11, 4, v0', 'v_lshlrev_b32 v13, 3, v11', 'v_add_u32 v13, v13, v10', 'v_lshlrev_b32 v13, 8, v13',
          'v_and_b32 v11, 1, v11', 'v_lshlrev_b32 v11, 2, v11', 'v_add_u32 v10, v10, v11', f's_lshl_b32 s33, {sW}, 1', 'v_xor_b32 v10, s33, v10',
          'v_lshlrev_b32 v10, 5, v10', 'v_and_b32 v11, 3, v0', 'v_lshlrev_b32 v11, 3, v11', 'v_add3_u32 v10, v10, v11, v13',
          f'v_add_u32 v{vT}, {QB}, v10', f'v_xor_b32 v{vT+1}, 32, v{vT}', f'v_add_u32 v{vT+2}, 0x10000, v{vT}', f'v_add_u32 v{vT+3}, 0x10000, v{vT+1}')
        e(f's_lshl_b32 s33, {sW}, 12', f's_add_u32 s33, s33, {QB}', 'v_lshlrev_b32 v10, 4, v0', f'v_add_u32 v{vWB}, s33, v10', f'v_add_u32 v{vWB+1}, 0x10000, v{vWB}')
        e(f's_lshl_b32 s36, {sT}, 17', f's_lshl_b32 s37, {sT}, 8', f's_lshl_b32 s38, {sW}, 12', f's_add_u32 s38, s38, {QB}',
          's_mov_b32 s39, 0x05040100', 's_mov_b32 s40, 0x07060302')
        items = [('o', c, half, jj) for c in range(2) for half in range(2) for jj in range(2)]
        items += [('w', m, c) for m in 'kvq' for c in range(8)]
        D = 6
        ST = 16
        done = self.lab('LOADED')
        labs = [self.lab(f'LDW{w}') for w in range(4)]
        for w in range(1, 4):
            e(f's_cmp_eq_u32 {sW}, {w}', f's_cbranch_scc1 {labs[w]}')
        for w in range(4):
            e(f'{labs[w]}:')
            nops = [8 if it[0] == 'o' else 4 for it in items]

            def issue(i):
                it = items[i]
                if it[0] == 'o':
                    _, c, half, jj = it
                    base = ST + 16 * (i % D)
                    for ph in range(2):
                        e(f's_add_u32 s33, s36, {(64*c + 8*jj + 32*ph) * 1024}')
                        for y in range(8):
                            if (y // 2) % 2 != ph: continue
                            r = 2 * (y // 4) + y % 2
                            e(f'buffer_load_dwordx2 {vr(base + 2*y, 2)}, v{vO}, {RA}, s33 offen offset:{r*1024 + half*128}')
                else:
                    _, m, c = it
                    R = {'k': RB, 'v': RC, 'q': RD}[m]
                    for j in range(4):
                        e(f's_add_u32 s33, s37, {(64*c + 4*j) * 8192}', f's_add_u32 m0, s38, {c*16384 + j*1024}', 's_nop 0',
                          f'buffer_load_dwordx4 v{vD0 + j//2}, {R}, s33 offen lds')

            def writeback(c, buf):
                for t in range(2):
                    for jj in range(2):
                        e(f'ds_write_b128 v{vWB + c//4}, {vr(buf + t*8 + jj*4, 4)} offset:{(c%4)*16384 + t*2048 + jj*1024}')

            for i in range(D): issue(i)
            for i, it in enumerate(items):
                after = sum(nops[i+1:min(i + D, len(items))])
                e(f's_waitcnt vmcnt({after})')
                if it[0] == 'o':
                    _, c, half, jj = it
                    base = ST + 16 * (i % D)
                    for x in range(4):
                        for yp in range(4):
                            d = 4 * half + x
                            e(f'v_perm_b32 v{128 + (d*2 + c)*8 + jj*4 + yp}, v{base + 2*(2*yp+1) + x//2}, v{base + 2*(2*yp) + x//2}, s{39 + x%2}')
                else:
                    _, m, c = it
                    e('s_barrier')
                    if m == 'k' and c == 0: self.signal_ready(10)
                    slot = (c - 2 * w) % 8
                    if m == 'q' and c > 0: writeback(c - 1, ST + 16 * ((c - 1) % 2))
                    for t in range(2):
                        for jj in range(2):
                            for hh in range(2):
                                if m == 'q': dst = vr(ST + 16 * (c % 2) + t*8 + jj*4 + hh*2, 2)
                                else: dst = ar((0 if m == 'k' else 128) + (slot*2 + t)*8 + jj*4 + hh*2, 2)
                                e(f'ds_read_b64_tr_b16 {dst}, v{vT + t + 2*(c//4)} offset:{(c%4)*16384 + jj*8192 + hh*1024}')
                    e('s_waitcnt lgkmcnt(0)')
                if i + D < len(items): issue(i + D)
            e('s_barrier')
            writeback(7, ST + 16)
            e('s_waitcnt lgkmcnt(0)')
            if w < 3: e(f's_branch {done}')
        e(f'{done}:', 's_barrier')


def smf(d, a, b, idx):
    return f'v_smfmac_f32_16x16x64_bf16 {vr(d,4)}, {vr(a,4)}, {b}, v{idx}'


def opnd(x):
    return x if isinstance(x, str) else vr(x, 4)


def mf32(d, a, b, c):
    return f'v_mfma_f32_16x16x32_bf16 {vr(d,4)}, {opnd(a)}, {opnd(b)}, {vr(c,4) if c is not None else 0}'


def zero(r, n):
    return [f'v_mov_b64 {vr(r+i,2)}, 0' for i in range(0, n, 2)]


def cvt(d, a, b):
    return f'v_cvt_pk_bf16_f32 v{d}, v{a}, v{b}'


def unpack(lo, hi, p):
    return [f'v_and_b32 v{hi}, 0xffff0000, v{p}', f'v_lshlrev_b32 v{lo}, 16, v{p}']


def rnd2(a, b, t):
    return [cvt(t, a, b)] + unpack(a, b, t)


def cross_rows(op, regs, tmps):
    L = []
    for sw in ('v_permlane16_swap_b32', 'v_permlane32_swap_b32'):
        L += [f'v_mov_b32 v{t}, v{r}' for r, t in zip(regs, tmps)]
        L += [f'{sw} v{r}, v{t}' for r, t in zip(regs, tmps)]
        L += [f'{op} v{r}, v{r}, v{t}' for r, t in zip(regs, tmps)]
    return L


def wave_sum(regs, tmps):
    L = []
    for k in (1, 2, 4, 8):
        L += [f'v_add_f32_dpp v{r}, v{r}, v{r} row_ror:{k} row_mask:0xf bank_mask:0xf' for r in regs]
    return L + cross_rows('v_add_f32', regs, tmps)


def sel_setup(g, lam4, seed, t0, t1):
    g.e(f'v_mov_b32 v{t0}, 0x3f80', f'v_mov_b32 v{t1}, 0x3f800000', f'v_cmp_eq_u32 vcc, 0, v{lam4}', f'v_cndmask_b32 v{t0}, v{t1}, v{t0}, vcc',
        f'v_cmp_gt_u32 vcc, 2, v{lam4}', f'v_cndmask_b32 v{seed}, 0, v{t0}, vcc')
    for j in range(4):
        m = 0x000f000f << (4 * j)
        g.e(f's_mov_b32 s{SELM+2*j}, {m:#x}', f's_mov_b32 s{SELM+1+2*j}, {m:#x}')


SELM = 52


def sel_build(sel, seed):
    return [f'v_cndmask_b32 v{sel+j}, 0, v{seed}, s[{SELM+2*j}:{SELM+1+2*j}]' for j in range(4)]


def ln_finish(a, b, mean, m2, t):
    return [f'v_mul_f32 v{m2}, 0x3b000000, v{m2}', *rnd2(mean, m2, t), f'v_add_f32 v{m2}, 0x3727c5ac, v{m2}', cvt(m2, m2, m2), f'v_lshlrev_b32 v{m2}, 16, v{m2}',
            f'v_sqrt_f32 v{m2}, v{m2}', 's_nop 0', cvt(m2, m2, m2), f'v_lshlrev_b32 v{m2}, 16, v{m2}', f'v_rcp_f32 v{m2}, v{m2}']
```

```python
from common import *
from att import (lane_consts, gather_rows, proj_out, signal_group, reduce_row, T0, L16, PST, HG, RLD, XC, SEED, FLA, T1, T2, T3, T4,
                 sN, sPB, sRB, sGF)

RL5, AW, H2F, GB = 1, 2, 3, 4
W2 = 128
ACT = 32768
sS, sI = 's41', 's42'
NPROD = 22
LOG2E = 0x3fb8aa3b


def pk(op, d, a, b, c=None, sel=None, neg=False):
    n = 3 if c is not None else 2
    s = f'v_pk_{op}_f32 {vr(d,2)}, {vr(a,2)}, {vr(b,2)}' + (f', {vr(c,2)}' if c is not None else '')
    if sel is not None:
        lo = [0] * n; hi = [1] * n
        lo[1] = hi[1] = sel
        s += f' op_sel:[{",".join(map(str, lo))}] op_sel_hi:[{",".join(map(str, hi))}]'
    if neg:
        z = [0] * n; z[1] = 1
        z = ",".join(map(str, z))
        s += f' neg_lo:[{z}] neg_hi:[{z}]'
    return s


def silu(regs, tmps):
    L = [f'v_mul_f32 v{t}, {LOG2E | 0x80000000:#x}, v{r}' for r, t in zip(regs, tmps)]
    L += [f'v_exp_f32 v{t}, v{t}' for t in tmps]
    L += [f'v_add_f32 v{t}, 1.0, v{t}' for t in tmps]
    L += [f'v_rcp_f32 v{t}, v{t}' for t in tmps]
    L += [f'v_mul_f32 v{r}, v{r}, v{t}' for r, t in zip(regs, tmps)]
    return L


def front(g):
    e = g.e
    lane = T4
    X = 64; CV = 96; WM = 128; U = 192; ST = 104; S = 28; ACC = 44
    g.srd(RA, P_X, 2 * MB); g.srd(RB, P_C, 1024); g.srd(RC, P_WMOD, 3 * MB)
    e(f's_sub_u32 {sI}, {sX}, {NATT + 1}', f's_mov_b32 {sS}, {sI}', f's_lshl_b32 {sI}, {sI}, 5', f's_add_u32 {sI}, {sI}, {sT}')
    e(f's_cmp_ge_u32 {sI}, 48', 's_cbranch_scc1 F_NOMOD0')
    e(f'v_lshrrev_b32 v28, 3, v{lane}', f's_lshl_b32 s33, {sW}, 3', 'v_add_u32 v28, s33, v28', 'v_lshlrev_b32 v29, 5, v28',
      f'buffer_load_dwordx4 {vr(CV,4)}, v29, {RB}, 0 offen', f'buffer_load_dwordx4 {vr(CV+4,4)}, v29, {RB}, 0 offen offset:16',
      f's_mov_b32 s33, {16*6144}', 'v_mul_lo_u32 v28, v28, s33', f'v_and_b32 v29, 7, v{lane}', 'v_lshlrev_b32 v29, 4, v29', 'v_add_u32 v28, v28, v29',
      f's_lshl_b32 s33, {sI}, 7')
    for n in range(16):
        e(f'buffer_load_dwordx4 {vr(WM + 4*n, 4)}, v28, {RC}, s33 offen')
        if n < 15: e('s_add_u32 s33, s33, 6144')
    e('F_NOMOD0:', f's_lshl_b32 s37, {sI}, 15', f's_lshl_b32 s34, {sW}, 13', 's_add_u32 s37, s37, s34', 's_add_u32 s34, s37, 4096')
    for r in range(8):
        e(f'buffer_load_dwordx4 {vr(X + 4*r, 4)}, v{L16}, {RA}, {"s37" if r < 4 else "s34"} offen offset:{(r % 4)*1024}')
    e(f's_cmp_ge_u32 {sI}, 48', 's_cbranch_scc1 F_NOMOD1')
    e('s_waitcnt vmcnt(24)', 's_barrier')
    g.signal_ready(T0)
    for k in range(8): e(*unpack(S + 2*k, S + 2*k + 1, CV + k))
    e(*silu(list(range(S, S + 16)), list(range(CV, CV + 8)) + list(range(ST, ST + 8))))
    for k in range(8): e(*rnd2(S + 2*k, S + 2*k + 1, T0))
    for n in range(16):
        e(f's_waitcnt vmcnt({8 + 15 - n})')
        for k in range(4):
            t = ST + 2 * k
            e(*unpack(t, t + 1, WM + 4*n + k))
        for k in range(4):
            t = ST + 2 * k
            e(pk('fma', ACC + 2*k, t, S + 2*(n // 2), ACC + 2*k, sel=n % 2) if n else pk('mul', ACC + 2*k, t, S, sel=0))
    A = list(range(ACC, ACC + 8))
    e(*[f'v_add_f32_dpp v{r}, v{r}, v{r} row_ror:8 row_mask:0xf bank_mask:0xf' for r in A], *cross_rows('v_add_f32', A, list(range(ST, ST + 8))))
    e(f'v_lshlrev_b32 v28, 5, v{lane}', f's_lshl_b32 s33, {sW}, 8', 'v_add_u32 v28, s33, v28', 's_mov_b64 exec, 0xff',
      f'ds_write_b128 v28, {vr(ACC,4)}', f'ds_write_b128 v28, {vr(ACC+4,4)} offset:16', 's_mov_b64 exec, -1', 's_waitcnt lgkmcnt(0)', 's_barrier',
      f's_cmp_lg_u32 {sW}, 0', 's_cbranch_scc1 F_MODDONE', f'v_lshlrev_b32 v28, 2, v{lane}')
    e(*[f'ds_read_b32 v{ACC+k}, v28 offset:{256*k}' for k in range(4)], 's_waitcnt lgkmcnt(0)',
      f'v_add_f32 v{ACC}, v{ACC}, v{ACC+1}', f'v_add_f32 v{ACC+2}, v{ACC+2}, v{ACC+3}', f'v_add_f32 v{ACC}, v{ACC}, v{ACC+2}',
      cvt(ACC, ACC, ACC), f'v_lshlrev_b32 v{ACC}, 16, v{ACC}',
      f's_lshr_b32 s33, {sI}, 3', 's_cmp_eq_u32 s33, 1', 's_cselect_b32 s34, 1.0, 0', 's_cmp_eq_u32 s33, 4', 's_cselect_b32 s34, 1.0, s34',
      f'v_add_f32 v{ACC}, s34, v{ACC}', cvt(ACC, ACC, ACC), f'v_lshlrev_b32 v{ACC}, 16, v{ACC}',
      f's_lshl_b32 s33, {sI}, 8', f's_add_u32 s33, s33, {MOD}', f'buffer_store_dword v{ACC}, v28, {WS}, s33 offen sc1', f'v_mov_b32 v{T0}, 1',
      's_waitcnt vmcnt(0)', 's_mov_b64 exec, 1', f'buffer_atomic_add v{T0}, off, {DBG}, 0 offset:{DB_MODCNT*4} sc1', 's_mov_b64 exec, -1', 's_branch F_MODDONE')
    e('F_NOMOD1:', 's_waitcnt vmcnt(8)', 's_barrier')
    g.signal_ready(T0)
    e('F_MODDONE:', 's_waitcnt vmcnt(0)')
    rows = range(8)
    TT = 28
    for r in rows:
        for k in range(4): e(*unpack(U + 8*r + 2*k, U + 8*r + 2*k + 1, X + 4*r + k))
    e(*[pk('add', TT + 4*r, U + 8*r, U + 8*r + 2) for r in rows], *[pk('add', TT + 4*r + 2, U + 8*r + 4, U + 8*r + 6) for r in rows],
      *[pk('add', TT + 4*r, TT + 4*r, TT + 4*r + 2) for r in rows], *[f'v_add_f32 v{ST + 2*r}, v{TT + 4*r}, v{TT + 4*r + 1}' for r in rows])
    means = [ST + 2*r for r in rows]; m2s = [ST + 2*r + 1 for r in rows]; tm = [TT + r for r in rows]
    e(*wave_sum(means, tm), *[f'v_mul_f32 v{m}, 0x3b000000, v{m}' for m in means])
    for k in range(4):
        e(*[pk('add', TT + 4*r, U + 8*r + 2*k, ST + 2*r, sel=0, neg=True) for r in rows])
        e(*[pk('fma', TT + 4*r + 2, TT + 4*r, TT + 4*r, TT + 4*r + 2) if k else pk('mul', TT + 4*r + 2, TT + 4*r, TT + 4*r) for r in rows])
    e(*[f'v_add_f32 v{ST + 2*r + 1}, v{TT + 4*r + 2}, v{TT + 4*r + 3}' for r in rows], *wave_sum(m2s, tm))
    fin = [[x for x in ln_finish(0, 0, ST + 2*r, ST + 2*r + 1, TT + r) if x != 's_nop 0'] for r in rows]
    for k in range(len(fin[0])): e(*[f[k] for f in fin])
    for r in rows:
        u = [U + 8*r + 2*k for k in range(4)]
        e(*[pk('add', a, a, ST + 2*r, sel=0, neg=True) for a in u], *[cvt(TT + k, a, a + 1) for k, a in enumerate(u)])
        for k, a in enumerate(u): e(*unpack(a, a + 1, TT + k))
        e(*[pk('mul', a, a, ST + 2*r, sel=1) for a in u], *[cvt(TT + k, a, a + 1) for k, a in enumerate(u)])
        for k, a in enumerate(u): e(*unpack(a, a + 1, TT + k))
    e('F_MP:', f'buffer_load_dword v{T0}, off, {DBG}, 0 offset:{DB_MODCNT*4} sc1', 's_waitcnt vmcnt(0)', f'v_cmp_le_u32 vcc, 48, v{T0}', 's_cbranch_vccnz F_MOK')
    g.retry('F_MP', 1)
    SA = 32; CA = 40
    e('F_MOK:', f'v_lshlrev_b32 v{T0}, 1, v{L16}', f'v_lshlrev_b32 v{T1}, 1, v{XC}', f's_mov_b32 s33, {MOD}', f's_mov_b32 s34, {MOD + 5*2048}',
      f'buffer_load_dwordx4 {vr(CA,4)}, v{T0}, {WS}, s33 offen offset:2048 sc1', f'buffer_load_dwordx4 {vr(CA+4,4)}, v{T0}, {WS}, s33 offen offset:2064 sc1',
      f'buffer_load_dwordx4 {vr(SA,4)}, v{T0}, {WS}, s33 offen sc1', f'buffer_load_dwordx4 {vr(SA+4,4)}, v{T0}, {WS}, s33 offen offset:16 sc1',
      f'buffer_load_dwordx2 {vr(GB,2)}, v{T1}, {WS}, s34 offen sc1',
      f's_add_u32 s37, s37, {HBUF}', 's_add_u32 s34, s37, 4096', 's_waitcnt vmcnt(0)')
    for r in rows:
        u = [U + 8*r + 2*k for k in range(4)]
        e(*[pk('mul', a, a, CA + 2*k) for k, a in enumerate(u)], *[cvt(TT + k, a, a + 1) for k, a in enumerate(u)])
        for k, a in enumerate(u): e(*unpack(a, a + 1, TT + k))
        e(*[pk('add', a, a, SA + 2*k) for k, a in enumerate(u)], *[cvt(X + 4*r + k, a, a + 1) for k, a in enumerate(u)],
          f'buffer_store_dwordx4 {vr(X + 4*r, 4)}, v{L16}, {WS}, {"s37" if r < 4 else "s34"} offen offset:{(r % 4)*1024} sc1')
    e(f's_lshr_b32 s33, {sI}, 5', 's_lshl_b32 s33, s33, 2', f's_lshl_b32 s34, 1, {sT}', f'v_mov_b32 v{T0}, s34', 's_waitcnt vmcnt(0)', 's_barrier',
      f's_cmp_lg_u32 {sW}, 0', 's_cbranch_scc1 F_HDONE',
      's_mov_b64 exec, 1', f'buffer_atomic_or v{T0}, off, {DBG}, s33 offset:{DB_HBITS*4} sc1', 's_mov_b64 exec, -1', 'F_HDONE:')


def weights(g):
    e = g.e
    lane = T4
    B1, B3 = 32768, 98304
    g.srd(RA, P_W1, 512 * 2752); g.srd(RB, P_W3, 512 * 2752); g.srd(RC, P_W2, 1376 * 1024)
    e(f's_cmp_ge_u32 {sT}, {NPROD}', 's_cbranch_scc1 F_WDONE')
    e(f's_cmp_eq_u32 {sT}, {NPROD-1}', 's_cselect_b32 s33, 3, 7', f'v_and_b32 v28, s33, v{lane}', 'v_lshlrev_b32 v28, 4, v28', f'v_lshrrev_b32 v29, 3, v{lane}',
      's_mov_b32 s33, 2752', 'v_mul_lo_u32 v29, v29, s33', f's_lshl_b32 s33, {sT}, 7', 'v_add3_u32 v28, v28, v29, s33',
      f's_mul_i32 s34, {sW}, {128*2752}', f's_lshl_b32 s35, {sW}, 14')
    for n in range(16):
        for R, B in ((RA, B1), (RB, B3)):
            e(f's_add_u32 m0, s35, {B + n*1024}', f'buffer_load_dwordx4 v28, {R}, s34 offen lds')
        if n < 15: e(f's_add_u32 s34, s34, {8*2752}')
    e(f'v_lshrrev_b32 v29, 4, v{lane}', 'v_lshlrev_b32 v30, 12, v29', f'v_and_b32 v31, 15, v{lane}', 'v_lshlrev_b32 v32, 3, v31', f's_lshl_b32 s33, {sT}, 16',
      f's_lshl_b32 s34, {sW}, 8', 's_add_u32 s33, s33, s34', 'v_add3_u32 v30, v30, v32, s33', 'v_add_u32 v32, 0x8000, v30', 's_mov_b32 s33, 16384',
      's_mov_b32 s39, 0x05040100', 's_mov_b32 s40, 0x07060302')
    e('v_lshlrev_b32 v33, 3, v29', 'v_lshrrev_b32 v34, 2, v31', 'v_add_u32 v33, v33, v34', 'v_lshlrev_b32 v33, 7, v33', 'v_and_b32 v34, 3, v31', 'v_lshlrev_b32 v34, 3, v34',
      f's_lshl_b32 s34, {sW}, 5', f's_add_u32 s34, s34, {B1}', 'v_add3_u32 v33, v33, v34, s34', f'v_add_u32 v34, {B3 - B1}, v33')
    e('s_waitcnt vmcnt(0)')
    for half in range(2):
        for jj in range(2):
            for y in range(8):
                e(f'buffer_load_dwordx2 {vr(192 + ((half*2 + jj)*8 + y)*2, 2)}, v{30 + 2*jj}, {RC}, {"s33" if y >= 4 else 0} offen offset:{(y % 4)*1024 + half*128}')
    e('s_barrier')
    for m in range(2):
        for kk in range(16):
            for hh in range(2):
                e(f'ds_read_b64_tr_b16 {ar(64*m + 4*kk + 2*hh, 2)}, v{33 + m} offset:{kk*4096 + hh*512}')
            if kk % 4 == 3: e('s_waitcnt lgkmcnt(0)')
    e('s_waitcnt vmcnt(0)')
    for half in range(2):
        for jj in range(2):
            base = 192 + (half*2 + jj)*16
            for x in range(4):
                for yp in range(4):
                    e(f'v_perm_b32 v{W2 + ((4*half + x)*2 + jj)*4 + yp}, v{base + 2*(2*yp+1) + x//2}, v{base + 2*(2*yp) + x//2}, s{39 + x % 2}')
    e('s_barrier', 'F_WDONE:')


def ffn_loop(g, mode):
    e = g.e
    sc = ' sc1' if mode == 'S' else ''
    L = lambda n: f'F{mode}_{n}'
    HF = 28; G = 60; U = 68; OF = 76
    e(f'{L("LOOP")}:', f's_cmp_ge_u32 {sT}, {NPROD}', f's_cbranch_scc1 {L("SIG")}',
      f's_lshl_b32 s33, {sS}, 9', f's_add_u32 s33, s33, {H2FLAG}',
      f'{L("HP")}:', f'buffer_load_dword v{T0}, v{H2F}, {WS}, s33 offen sc1', 's_waitcnt vmcnt(0)', f'v_cmp_eq_u32 vcc, 0, v{T0}', f's_cbranch_vccz {L("HOK")}')
    g.retry(L('HP'), g.opt.get('f_hsleep', 2))
    e(f'{L("HOK")}:', f's_lshl_b32 s33, {sS}, 15', f's_add_u32 s33, s33, {H2BUF}')
    gather_rows(g, 's33')
    e('s_waitcnt vmcnt(0)', 's_barrier')
    rd = lambda kk: [f'ds_read_b128 {vr(HF + 8*(kk % 4) + 4*tt, 4)}, v{L16} offset:{(kk*2 + tt)*1024}' for tt in range(2)]
    for kk in range(3): e(*rd(kk))
    for kk in range(16):
        if kk + 3 < 16: e(*rd(kk + 3))
        e(f's_waitcnt lgkmcnt({2 * min(3, 15 - kk)})')
        for tt in range(2):
            for m, A in ((0, G), (1, U)):
                e(mf32(A + 4*tt, ar(64*m + 4*kk, 4), HF + 8*(kk % 4) + 4*tt, A + 4*tt if kk else None))
    for k in range(4): e(*rnd2(G + 2*k, G + 2*k + 1, HF + k))
    e(*silu(list(range(G, G + 8)), list(range(HF, HF + 8))))
    for k in range(4): e(*rnd2(G + 2*k, G + 2*k + 1, HF + k), *rnd2(U + 2*k, U + 2*k + 1, HF + 4 + k))
    e(*[pk('mul', G + 2*k, G + 2*k, U + 2*k) for k in range(4)], *[cvt(U + k, G + 2*k, G + 2*k + 1) for k in range(4)],
      f'ds_write_b64 v{AW}, {vr(U,2)}', f'ds_write_b64 v{AW}, {vr(U+2,2)} offset:2048', 's_waitcnt lgkmcnt(0)', 's_barrier',
      *[f'ds_read_b128 {vr(OF + 4*n, 4)}, v{L16} offset:{ACT + n*1024}' for n in range(4)], 's_waitcnt lgkmcnt(0)')
    proj_out(g, lambda d, k: W2 + (d*2 + k)*4, 2, OF, 92, 28, sc)
    e(f'{L("SIG")}:')
    signal_group(g, sc)
    XR = 88; RD_ = 84
    e(f's_lshl_b32 s38, {sS}, 5', f's_add_u32 s38, s38, {sT}', 's_lshl_b32 s38, s38, 10', f's_add_u32 s37, s38, {X1BUF}')
    reduce_row(g, 'F', 6, 56, 80, RD_, last=RL5, extra=[f'buffer_load_dword v{XR}, v{XC}, {WS}, s37 offen sc1'])
    a, b = RD_, RD_ + 1
    e(*unpack(XR, XR+1, XR), *rnd2(a, b, T0), pk('mul', a, a, GB), *rnd2(a, b, T0), pk('add', a, a, XR), cvt(a, a, b),
      f'buffer_store_dword v{a}, v{XC}, {RD}, s38 offen',
      f's_add_u32 {sS}, {sS}, {NFFN}', f's_cmp_lt_u32 {sS}, 64', f's_cbranch_scc1 {L("LOOP")}', 's_waitcnt vmcnt(0)', 's_endpgm')


def ffn_role(g):
    e = g.e
    lane, lam, grp = T4, T3, T2
    e(f'v_mov_b32 v{lane}, v0')
    lane_consts(g, lane, lam, grp)
    g.srd(RD, P_OUT, 2 * MB)
    e(f'v_mov_b32 v28, {OOB}', f'v_cmp_gt_u32 vcc, 2, v{grp}', f'v_cndmask_b32 v{RL5}, v28, v{RLD}, vcc',
      f's_lshr_b32 s33, {sW}, 1', 's_lshl_b32 s33, s33, 10', f's_and_b32 s34, {sW}, 1', 's_lshl_b32 s34, s34, 3', 's_add_u32 s33, s33, s34',
      f's_add_u32 s33, s33, {ACT}', f'v_add_u32 v{AW}, s33, v{L16}',
      f'v_lshlrev_b32 v28, 2, v{FLA}', f's_lshl_b32 s33, {sW}, 2', f'v_add_u32 v{H2F}, s33, v28')
    front(g)
    weights(g)
    g.wait_ready(T4, T1, T2)
    e(f's_cmp_lg_u32 {sMODE}, 0', 's_cbranch_scc1 FS_LOOP')
    ffn_loop(g, 'F')
    ffn_loop(g, 'S')
```

```python
KB = 1024
MB = 1024 * 1024
FLAGS   = 0
KVFLAG  = FLAGS
H2FLAG  = FLAGS + 32 * KB
GFLAG   = FLAGS + 64 * KB
ZEROS   = FLAGS + 96 * KB
MOD     = 128 * KB
MRING   = 192 * KB
MHIST   = 512 * KB
INBOX   = 1 * MB
HBUF    = 2 * MB
H2BUF   = 4 * MB
X1BUF   = 6 * MB
STAMP   = 8 * MB
KX      = 16 * MB
VX      = 32 * MB
QX      = 48 * MB
INB2    = 64 * MB
DUMP    = 128 * MB
WS_BYTES = 256 * MB

DB_TICKET = 0
DB_OVF    = 32
DB_CNTO   = 33
DB_MODCNT = 34
DB_HBITS  = 36
DB_CNTG   = 40

NATT = 5
NFFN = 2
OOB = 0x80000000
```

```python
from common import *

MBUF, KXBUF, QKBUF, OBUF, WQB = 0, 8192, 16384, 20480, 32768
T0, VG, WQ0, MB1, L16, QKW, QKR, OW, VA, VP, IDX, SEED, FLG, MSL, T1 = 0, 1, 2, 6, 9, 10, 11, 12, 13, 14, 15, 16, 17, 18, 19
SENT = SM = 20
K0, Q0, K1, Q1 = 24, 28, 32, 36
V0, V1 = 24, 28
X0, X1 = 32, 36
VX_ = 40
M = 48
RING = 80
WO = 128
sS, sMR, sMP, sHI, sIR, sIA, sPA, sPB, sFL, sKX, sVX, sC = [f's{i}' for i in range(41, 53)]
sONE = 's[54:55]'
sMASK = [f's[{64+2*j}:{65+2*j}]' for j in range(4)]
STS = 72


_smf = smf


def smf(d, a, b):
    return _smf(d, a, b, IDX)


def team_init(g):
    e = g.e
    g.srd(RA, P_MEM0, 8192)
    e('v_lshrrev_b32 v10, 4, v0', 'v_and_b32 v11, 1, v10', 'v_lshlrev_b32 v11, 10, v11', 'v_lshrrev_b32 v12, 1, v10', 'v_lshlrev_b32 v12, 2, v12',
      'v_and_b32 v13, 15, v0', 'v_lshlrev_b32 v14, 3, v13', 'v_add3_u32 v11, v11, v12, v14',
      f's_lshl_b32 s33, {sW}, 11', f's_lshl_b32 s34, {sT}, 5', 's_add_u32 s33, s33, s34',
      'v_lshlrev_b32 v12, 4, v10', 'v_lshlrev_b32 v14, 2, v13', f's_lshl_b32 s35, {sW}, 6', 'v_add3_u32 v12, v12, v14, s35',
      f'v_mov_b32 v14, {OOB}', 'v_cmp_gt_u32 vcc, 4, v13', 'v_cndmask_b32 v11, v14, v11, vcc', 'v_cndmask_b32 v113, v14, v12, vcc',
      f'buffer_load_dword v112, v11, {RA}, s33 offen',
      'v_mov_b32 v20, -1', 'v_mov_b32 v21, -1', 'v_mov_b32 v22, -1', 'v_mov_b32 v23, -1',
      'v_lshlrev_b32 v10, 4, v0', f's_lshl_b32 s33, {sW}, 11', f's_lshl_b32 s34, {sT}, 13', 's_add_u32 s33, s33, s34', f's_add_u32 s33, s33, {INBOX}',
      f'buffer_store_dwordx4 v[20:23], v10, {WS}, s33 offen sc1', f'buffer_store_dwordx4 v[20:23], v10, {WS}, s33 offen offset:1024 sc1',
      f's_lshl_b32 s34, {sT}, 8', f's_add_u32 s34, s34, {MRING}', 's_waitcnt vmcnt(2)', 'v_min_u32 v112, -2, v112',
      f'buffer_store_dword v112, v113, {WS}, s34 offen sc1')


def team_setup(g):
    e = g.e
    e(f'v_mov_b32 v{MSL}, v112', f'v_mov_b32 v{VP}, v113', 'v_mov_b32 v20, v0')
    e(f'v_lshlrev_b32 v{L16}, 4, v20', f's_lshl_b32 s33, {sW}, 11', f'v_add_u32 v{VG}, s33, v{L16}')
    for p in range(4):
        e(f's_add_u32 s33, {sW}, {p}', 's_and_b32 s33, s33, 3')
        if p: e('s_lshl_b32 s34, s33, 11', f'v_add_u32 v{MB1+p-1}, s34, v{L16}')
        e('s_lshl_b32 s33, s33, 15', f's_lshl_b32 s34, {sW}, 12', 's_add_u32 s33, s33, s34', f's_add_u32 s33, s33, {WQB}', f'v_add_u32 v{WQ0+p}, s33, v{L16}')
    e('v_and_b32 v21, 15, v20', 'v_lshrrev_b32 v22, 4, v20')
    e('v_lshrrev_b32 v23, 2, v21', 'v_xor_b32 v24, v22, v23', 'v_lshlrev_b32 v24, 3, v24', 'v_lshlrev_b32 v25, 5, v21',
      f's_lshl_b32 s33, {sW}, 10', f's_add_u32 s33, s33, {QKBUF}', f'v_add3_u32 v{QKW}, v24, v25, s33')
    e('v_lshlrev_b32 v24, 2, v22', 'v_add_u32 v24, v24, v23', 'v_lshlrev_b32 v24, 5, v24', 'v_and_b32 v25, 3, v21', 'v_xor_b32 v26, v25, v22',
      'v_lshlrev_b32 v26, 3, v26', f's_mov_b32 s33, {QKBUF}', f'v_add3_u32 v{QKR}, v24, v26, s33')
    e('v_lshlrev_b32 v24, 6, v23', 'v_and_b32 v26, 1, v21', 'v_lshlrev_b32 v26, 4, v26', 'v_lshlrev_b32 v27, 8, v22', 'v_add3_u32 v24, v24, v26, v27',
      f's_lshr_b32 s33, {sW}, 1', 's_lshl_b32 s33, s33, 10', f's_and_b32 s34, {sW}, 1', 's_lshl_b32 s34, s34, 5', 's_add_u32 s33, s33, s34',
      f's_add_u32 s33, s33, {OBUF}', f'v_add_u32 v24, s33, v24', 'v_xor_b32 v26, 32, v24', 'v_add_u32 v26, 0x800, v26',
      'v_cmp_lt_u32 vcc, 1, v25', f'v_cndmask_b32 v{OW}, v26, v24, vcc')
    e('v_lshlrev_b32 v24, 13, v23', 'v_lshlrev_b32 v26, 11, v22', 'v_lshlrev_b32 v27, 4, v25', 'v_add3_u32 v24, v24, v26, v27',
      f's_lshl_b32 s33, {sW}, 16', f'v_add_u32 v{VA}, s33, v24')
    e('v_mov_b32 v24, 0x44444444', 'v_mov_b32 v26, 0xeeeeeeee', f'v_cndmask_b32 v{IDX}, v24, v26, vcc',
      'v_mov_b32 v24, 0x3f80', 'v_mov_b32 v26, 0x3f800000', 'v_cmp_eq_u32 vcc, 0, v25', 'v_cndmask_b32 v24, v26, v24, vcc',
      'v_cmp_gt_u32 vcc, 2, v25', f'v_cndmask_b32 v{SEED}, 0, v24, vcc')
    for j in range(4):
        m = 0x000f000f << (4 * j)
        e(f's_mov_b32 s{64+2*j}, {m:#x}', f's_mov_b32 s{65+2*j}, {m:#x}')
    e('s_mov_b32 s54, 0x3f803f80', 's_mov_b32 s55, 0x3f803f80', f's_mov_b32 {sC}, 0x3e0293ee')
    e(f's_mov_b32 {sS}, 0', f's_mov_b32 {sMR}, {MRING}', f's_lshl_b32 s33, {sT}, 8', f's_add_u32 {sMP}, s33, {MRING + 8192}', f's_add_u32 {sHI}, s33, {MHIST}',
      f's_lshl_b32 s33, {sT}, 13', f's_add_u32 {sIR}, s33, {INBOX}', f's_add_u32 {sIA}, s33, {INBOX + 262144}',
      f's_add_u32 {sKX}, s33, {KX}', f's_add_u32 {sVX}, s33, {VX}',
      f's_lshl_b32 s33, {sT}, 6', f's_add_u32 {sPA}, s33, {INBOX}', f's_add_u32 {sPB}, s33, {INBOX + 32768}',
      f's_lshl_b32 s33, {sT}, 10', f's_lshl_b32 s34, {sW}, 2', 's_add_u32 s33, s33, s34', f's_add_u32 {sFL}, s33, {KVFLAG}')


def wq_read(f, jj):
    order = [(0, 0), (0, 1), (1, 0), (1, 1)] + [(i, 0) for i in range(2, 8)] + [(i, 1) for i in range(2, 8)]
    i, t = order[f]
    return f'ds_read_b128 {vr(RING + 8*(f%6) + 4*jj, 4)}, v{WQ0 + i//2} offset:{(i%2)*16384 + t*2048 + jj*1024}'


def team_loop(g, mode):
    e = g.e
    opt = g.opt
    sc = ' sc1' if mode == 'S' else ''
    st = opt.get('stamps')
    def stamp(k):
        return [f's_memtime s[{STS+2*k}:{STS+2*k+1}]'] if st else []
    L = lambda n: f'T{mode}_{n}'
    KXS = [RING + 32, RING + 40, RING + 0, RING + 8]
    QKF = RING + 16
    P = RING + 16; PMA = RING + 20; PMB = RING + 24; VM = X1 + 2
    ONES = RING + 32; SUM = RING + 36; O0 = RING + 40; O1 = RING + 44
    OF = RING + 16
    STG = RING
    RP = M + 16
    SEL = 32; RD_ = 36

    def kv_loads():
        return [f'buffer_load_dwordx4 {vr(STG,4)}, v{VG}, {WS}, {sKX} offen sc1', f'buffer_load_dwordx4 {vr(STG+4,4)}, v{VG}, {WS}, {sKX} offen offset:1024 sc1',
                f'buffer_load_dwordx4 {vr(STG+8,4)}, v{VG}, {WS}, {sVX} offen sc1', f'buffer_load_dwordx4 {vr(STG+12,4)}, v{VG}, {WS}, {sVX} offen offset:1024 sc1']

    def kv_place():
        return [f'ds_write_b128 v{VG}, {vr(STG,4)} offset:{KXBUF}', f'ds_write_b128 v{VG}, {vr(STG+4,4)} offset:{KXBUF+1024}'] + \
               [f'v_mov_b64 {vr(VX_+i,2)}, {vr(STG+8+i,2)}' for i in range(0, 8, 2)]

    def preload():
        return [wq_read(f, jj) for f in range(6) for jj in range(2)]

    def mpoll():
        return [f'buffer_load_dwordx4 {vr(M,4)}, v{VG}, {WS}, {sMR} offen sc1', f'buffer_load_dwordx4 {vr(M+4,4)}, v{VG}, {WS}, {sMR} offen offset:1024 sc1']

    def rpoll():
        return [f'buffer_load_dwordx4 {vr(RP,4)}, v{VG}, {WS}, {sIR} offen sc1', f'buffer_load_dwordx4 {vr(RP+4,4)}, v{VG}, {WS}, {sIR} offen offset:1024 sc1']

    dup = lambda l: [x + ' ; dup' for x in l]
    nop = lambda n: [f's_nop {min(n - k, 16) - 1}' for k in range(0, n, 16)]

    def check(r, again):
        e(f'v_max3_u32 v{T0}, v{r}, v{r+1}, v{r+2}', f'v_max3_u32 v{T1}, v{r+3}, v{r+4}, v{r+5}', f'v_max_u32 v{T0}, v{T0}, v{r+6}',
          f'v_max3_u32 v{T0}, v{T0}, v{T1}, v{r+7}', f'v_cmp_eq_u32 vcc, -1, v{T0}', f's_cbranch_vccnz {again}')

    e(f'{L("ENTRY")}:', f'{L("F0")}:', f'buffer_load_dword v{FLG}, off, {WS}, {sFL} sc1', 's_waitcnt vmcnt(0)',
      f'v_cmp_ne_u32 vcc, 0, v{FLG}', f's_cbranch_vccnz {L("F0OK")}')
    g.retry(L('F0'), 2)
    e(f'{L("F0OK")}:', *kv_loads(), f's_add_u32 {sFL}, {sFL}, 16', f's_add_u32 {sKX}, {sKX}, 0x40000', f's_add_u32 {sVX}, {sVX}, 0x40000',
      's_waitcnt vmcnt(0)', *kv_place(), *preload())
    e(*mpoll(), *dup(mpoll()), *zero(K0, 16), f'v_mov_b64 {vr(SENT,2)}, -1', f'v_mov_b64 {vr(SENT+2,2)}, -1', 's_waitcnt vmcnt(2)')

    e(f'{L("STEP")}:', f's_waitcnt vmcnt({3 if st else 2})')
    check(M, L('MRETRY'))
    e(f'{L("MOK")}:')
    e(*stamp(0))
    if st: e(f's_mov_b32 s90, {sBUD}')
    e(f'ds_write_b128 v{VG}, {vr(M,4)} offset:{MBUF}', f'ds_write_b128 v{VG}, {vr(M+4,4)} offset:{MBUF+1024}')
    e('s_waitcnt lgkmcnt(2)')
    wk = lambda i, t: ar((i*2 + t)*8, 8)
    wv = lambda i, t: ar(128 + (i*2 + t)*8, 8)
    wq = lambda f: vr(RING + 8*(f % 6), 8)
    mf = [smf(Q0, M, wq(0)), smf(Q1, M, wq(1)), smf(Q0, M+4, wq(2)), smf(Q1, M+4, wq(3)),
          smf(K0, M, wk(0, 0)), smf(K1, M, wk(0, 1)), smf(K0, M+4, wk(1, 0)), smf(K1, M+4, wk(1, 1))]
    for i in range(2, 8): mf += [smf(Q0, M+4*i, wq(2+i)), smf(K0, M+4*i, wk(i, 0))]
    for i in range(2, 8): mf += [smf(Q1, M+4*i, wq(8+i)), smf(K1, M+4*i, wk(i, 1))]
    mread = lambda i: f'ds_read_b128 {vr(M+4*i,4)}, v{MB1 + i//2 - 1} offset:{MBUF + (i%2)*1024}'
    kxread = lambda j, tt: f'ds_read_b128 {vr(KXS[j]+4*tt,4)}, v{L16} offset:{KXBUF + j*2048 + tt*1024}'
    W = lambda f: [(wq_read(f, 0), 2*f), (wq_read(f, 1), 2*f)]
    Mr = lambda i: [(mread(i), 2*i + 4)]
    first = opt.get('t_first', 3)
    pre = (W(6) + W(7) + W(8))[:first + 1]
    rest = (W(6) + W(7) + W(8))[first + 1:]
    reads = Mr(2) + Mr(3) + Mr(4) + rest + Mr(5) + W(9) + Mr(6) + Mr(7)
    for f in range(10, 16): reads += W(f)
    gaps = {i: [] for i in range(40)}
    q = []
    for n, (txt, by) in enumerate(pre): q.append([n, txt, by])
    q.append([first, f's_waitcnt lgkmcnt({len(pre)})\ns_barrier' + ''.join('\n' + x for x in stamp(1)), -1])
    gi = first
    for txt, by in reads:
        q.append([gi, txt, by]); gi += 1
    pack0 = [f'v_add_f32 v{K0}, v{K0}, v{K0+2}', f'v_add_f32 v{K0+1}, v{K0+1}, v{K0+3}', f'v_add_f32 v{Q0}, v{Q0}, v{Q0+2}', f'v_add_f32 v{Q0+1}, v{Q0+1}, v{Q0+3}',
             f'v_cvt_pk_bf16_f32 v{T0}, v{K0}, v{K0+1}', f'v_cvt_pk_bf16_f32 v{K0+3}, v{Q0}, v{Q0+1}']
    pack0[4] = f'v_cvt_pk_bf16_f32 v{K0+2}, v{K0}, v{K0+1}'
    valu = {20: pack0[2], 21: pack0[3], 22: pack0[0], 23: pack0[1], 24: pack0[5], 25: pack0[4]}
    wr0 = f'ds_write_b64 v{QKW}, {vr(K0+2,2)}'
    q.append([26, wr0, 99])
    kx = [(kxread(j, tt)) for j in range(4) for tt in range(2)]
    kxgap = []
    for n, txt in enumerate(kx):
        lo = [20, 20, 22, 22, 24, 24, 26, 26][n]
        gg = max(gi, lo); q.append([gg, txt, 99]); gi = gg + 1
    q.sort(key=lambda x: x[0])
    for z in range(4): valu[27 + z] = zero(V0, 8)[z]
    rearm = [f'buffer_store_dword v{SENT}, v{VP}, {WS}, {sMP} offen{sc}', f'buffer_store_dwordx4 {vr(SENT,4)}, v{VG}, {WS}, {sIA} offen{sc}',
             f'buffer_store_dwordx4 {vr(SENT,4)}, v{VG}, {WS}, {sIA} offen offset:1024{sc}']
    misc = {
        5: [f'buffer_load_dword v{FLG}, off, {WS}, {sFL} sc1'],
        7: [f'buffer_store_dword v{MSL}, v{VP}, {WS}, {sHI} offen sc1'],
        9: [rearm[0]],
        10: [f's_xor_b32 {sMR}, {sMR}, 0x2000'], 11: [f's_add_u32 {sHI}, {sHI}, 0x2000'],
        12: [f's_add_u32 {sS}, {sS}, 1'],
    }
    misc.setdefault(opt.get('t_ra1', 14), []).append(rearm[1])
    misc.setdefault(opt.get('t_ra2', 22), []).append(rearm[2])
    vs = []
    for i in range(8): vs += [smf(V0, M+4*i, wv(i, 0)), smf(V1, M+4*i, wv(i, 1))]
    nA = opt.get('t_vA', 2); nB = opt.get('t_vB', 3); nC = opt.get('t_vC', 5); nD = opt.get('t_vD', 2)
    mfa = mf + vs[:nA]
    issued = []
    for i, m in enumerate(mfa):
        needed = [k for k, x in enumerate(issued) if x[2] == i]
        if needed: e(f's_waitcnt lgkmcnt({len(issued) - 1 - max(needed)})')
        e(m)
        for x in gaps.get(i, []): e(x)
        for x in q:
            if x[0] == i or (i == len(mfa) - 1 and x[0] > i):
                e(x[1])
                if x[2] >= 0: issued.append(x)
        for x in misc.get(i, []): e(x)
        if i in valu: e(valu[i])
    vs = vs[nA:]
    e(*stamp(2))
    g.dump('qk', [f'v{i}' for i in range(1, 128)], L16, T0)
    e(f'v_add_f32 v{K1}, v{K1}, v{K1+2}', f'v_add_f32 v{K1+1}, v{K1+1}, v{K1+3}', f'v_add_f32 v{Q1}, v{Q1}, v{Q1+2}', f'v_add_f32 v{Q1+1}, v{Q1+1}, v{Q1+3}',
      f'v_cvt_pk_bf16_f32 v{K1+2}, v{K1}, v{K1+1}', f'v_cvt_pk_bf16_f32 v{K1+3}, v{Q1}, v{Q1+1}', f'ds_write_b64 v{QKW}, {vr(K1+2,2)} offset:512')
    e(*vs[:nB]); vs = vs[nB:]
    e('s_waitcnt lgkmcnt(0)', 's_barrier')
    tr = [f'ds_read_b64_tr_b16 {vr(QKF + 4*j + 2*u, 2)}, v{QKR} offset:{j*1024 + u*512}' for j in range(4) for u in range(2)]
    e(*tr[:2])
    k = 2
    for m in vs[:nC]:
        e(m, *tr[k:k+2]); k += 2
    e(*tr[k:])
    vs = vs[nC:]
    for j in range(4):
        e(f's_waitcnt lgkmcnt({6 - 2*j})')
        e(mf32(X0, KXS[j], QKF + 4*j, X0 if j else None), mf32(X1, KXS[j] + 4, QKF + 4*j, X1 if j else None))
        if j == 1: e(f'v_mov_b64 {vr(ONES,2)}, {sONE}', f'v_mov_b64 {vr(ONES+2,2)}, {sONE}')
        if j == 3: e('s_waitcnt vmcnt(4)', f'v_cmp_eq_u32 vcc, 0, v{FLG}')
        e(mf32(SM, QKF + 4*j, QKF + 4*j, SM if j else None))
    e(f's_cbranch_vccnz {L("FRETRY")}', f'{L("FOK")}:')
    ld = kv_loads()
    if opt.get('t_nokv'): ld = [x.replace(sKX, sIR).replace(sVX, sIR).replace(f'v{VG},', f'v{VP},').replace('dwordx4 v[', 'dword v').replace(':83]', '').replace(':87]', '').replace(':91]', '').replace(':95]', '') for x in ld]
    zp = zero(PMA, 8)
    for m in vs[:nD]:
        e(m, *ld[:2], zp.pop(0)); ld = ld[2:]
    e(*ld)
    vs = vs[nD:]
    e(*stamp(3))
    g.dump('s', [f'v{i}' for i in range(1, 128)], L16, T0)
    e(f'v_max3_f32 v{T0}, v{X0}, v{X0+1}, v{X0+2}', f'v_max3_f32 v{T1}, v{X0+3}, v{X1}, v{X1+1}', f'v_max3_f32 v{T0}, v{T0}, v{X1+2}, v{X1+3}',
      f'v_max3_f32 v{T1}, v{T1}, v{SM}, v{SM+1}', f'v_max_f32 v{T0}, v{T0}, v{T1}', f'v_mov_b32 v{T1}, v{T0}')
    if vs: e(vs.pop(0))
    e(f'v_permlane32_swap_b32 v{T0}, v{T1}', f'v_max_f32 v{T0}, v{T0}, v{T1}', f'v_mov_b32 v{T1}, v{T0}')
    if vs: e(vs.pop(0))
    e(f'v_permlane16_swap_b32 v{T0}, v{T1}', f'v_max_f32 v{T0}, v{T0}, v{T1}', f'v_mul_f32 v{T0}, {sC}, v{T0}')
    sr = [X0, X0+1, X0+2, X0+3, X1, X1+1, X1+2, X1+3, SM, SM+1]
    for r in sr: e(f'v_fma_f32 v{r}, v{r}, {sC}, -v{T0}')
    for m in vs: e(m, *zp[:1]); zp = zp[1:]
    vs = []
    e(*zp)
    for r in sr: e(f'v_exp_f32 v{r}, v{r}')
    for n in range(4): e(f'v_cvt_pk_bf16_f32 v{P+n}, v{sr[2*n]}, v{sr[2*n+1]}')
    e(f'v_cvt_pk_bf16_f32 v{PMA}, v{SM}, v{SM+1}', f'v_cvt_pk_bf16_f32 v{PMB+1}, v{SM}, v{SM+1}')
    vp = [f'v_add_f32 v{V0}, v{V0}, v{V0+2}', f'v_add_f32 v{V0+1}, v{V0+1}, v{V0+3}', f'v_add_f32 v{V1}, v{V1}, v{V1+2}', f'v_add_f32 v{V1+1}, v{V1+1}, v{V1+3}',
          f'v_cvt_pk_bf16_f32 v{VM}, v{V0}, v{V0+1}', f'v_cvt_pk_bf16_f32 v{VM+1}, v{V1}, v{V1+1}']
    e(mf32(SUM, ONES, P, None), *vp[:2], mf32(SUM, ONES, PMA, SUM), *vp[2:4], mf32(O0, VX_, P, None), *vp[4:6], mf32(O1, VX_+4, P, None))
    zw = zero(M, 32)
    e(*zw[:2], mf32(O0, VM, PMA, O0), f'v_rcp_f32 v{T0}, v{SUM}', mf32(O1, VM, PMB, O1), *zw[2:6])
    for r in range(4): e(f'v_mul_f32 v{O0+r}, v{O0+r}, v{T0}')
    e(f'v_cvt_pk_bf16_f32 v{O0}, v{O0}, v{O0+1}', f'v_cvt_pk_bf16_f32 v{O0+1}, v{O0+2}, v{O0+3}')
    for r in range(4): e(f'v_mul_f32 v{O1+r}, v{O1+r}, v{T0}')
    e(f'v_cvt_pk_bf16_f32 v{O0+2}, v{O1}, v{O1+1}', f'v_cvt_pk_bf16_f32 v{O0+3}, v{O1+2}, v{O1+3}', f'ds_write_b128 v{OW}, {vr(O0,4)}')
    e(*stamp(4))
    g.dump('o', [f'v{i}' for i in range(1, 128)], L16, T0)
    e(*zw[6:12], 's_waitcnt vmcnt(4) lgkmcnt(0)', 's_barrier',
      f'ds_read_b128 {vr(OF,4)}, v{L16} offset:{OBUF}', f'ds_read_b128 {vr(OF+4,4)}, v{L16} offset:{OBUF+1024}', *zw[12:],
      f's_xor_b32 {sIA}, {sIA}, 0x40000',
      f's_add_u32 {sFL}, {sFL}, 16', f's_add_u32 {sKX}, {sKX}, 0x40000', f's_add_u32 {sVX}, {sVX}, 0x40000')
    wo = lambda d, c: vr(WO + (d*2 + c)*8, 8)
    order = []
    for pr in range(4): order += [(2*pr, 0), (2*pr+1, 0), (2*pr, 1), (2*pr+1, 1)]
    mf = [smf(M + 4*d, OF + 4*c, wo(d, c)) for d, c in order]
    PH = [SENT, K0]
    def packp(pr):
        a, b = M + 8*pr, M + 8*pr + 4
        ph = PH[pr // 2] + 2*(pr % 2)
        return [f'v_add_f32 v{a}, v{a}, v{a+2}', f'v_add_f32 v{b}, v{b}, v{b+2}', f'v_add_f32 v{a+1}, v{a+1}, v{a+3}', f'v_add_f32 v{b+1}, v{b+1}, v{b+3}',
                f'v_cvt_pk_bf16_f32 v{ph}, v{a}, v{b}', f'v_cvt_pk_bf16_f32 v{ph+1}, v{a+1}, v{b+1}']
    pend = []
    gaps = {}
    for i in range(16):
        if i >= 5 and (i - 5) % 4 == 0: pend += packp((i - 5) // 4)
        n = 2 if (i % 2 == 1) else 1
        gaps[i] = pend[:n]; pend = pend[n:]
    e('s_waitcnt lgkmcnt(1)')
    for i, m in enumerate(mf):
        if i == 2: e('s_waitcnt lgkmcnt(0)')
        e(m, *gaps[i])
        if gaps[i] and gaps[i][-1].startswith(f'v_cvt_pk_bf16_f32 v{PH[0]+3},'):
            e(f'buffer_store_dwordx4 {vr(PH[0],4)}, v{VA}, {WS}, {sPA} offen{sc}')
    e(*pend, *packp(3), f'buffer_store_dwordx4 {vr(PH[1],4)}, v{VA}, {WS}, {sPB} offen{sc}')
    e(*stamp(5))
    g.dump('p', [f'v{i}' for i in range(1, 128)], L16, T0)
    pl = preload()
    e(*[f'v_cndmask_b32 v{SEL+j}, 0, v{SEED}, {sMASK[j]}' for j in range(4)], f's_xor_b32 {sPA}, {sPA}, 0x40000', f's_xor_b32 {sPB}, {sPB}, 0x40000',
      's_waitcnt vmcnt(2)', *kv_place(), *zero(K0, 8), f'v_mov_b64 {vr(SENT,2)}, -1', f'v_mov_b64 {vr(SENT+2,2)}, -1')
    npr = opt.get('t_npr', 6)
    e(*pl[:npr], *nop(opt.get('t_rd1', 0)), *rpoll(), *nop(opt.get('t_rd2', 28)), *dup(rpoll()), 's_waitcnt vmcnt(2)')
    check(RP, L('RRETRY'))
    e(f'{L("ROK")}:')
    e(*stamp(6))
    if st: e(f's_mov_b32 s91, {sBUD}')
    e(mf32(RD_, SEL, RP, None), mf32(RD_, SEL, RP+4, RD_), f's_xor_b32 {sIR}, {sIR}, 0x40000', f's_cmp_eq_u32 {sS}, {opt.get("nsteps", 63)}')
    e(f'v_add_f32_dpp v{RD_}, v{RD_}, v{RD_} row_ror:4 row_mask:0xf bank_mask:0xf', f'v_add_f32_dpp v{RD_+1}, v{RD_+1}, v{RD_+1} row_ror:4 row_mask:0xf bank_mask:0xf',
      f'v_add_f32_dpp v{RD_}, v{RD_}, v{RD_} row_ror:8 row_mask:0xf bank_mask:0xf', f'v_add_f32_dpp v{RD_+1}, v{RD_+1}, v{RD_+1} row_ror:8 row_mask:0xf bank_mask:0xf',
      f'v_cvt_pk_bf16_f32 v{MSL}, v{RD_}, v{RD_+1}', f'v_min_u32 v{MSL}, -2, v{MSL}', f's_cbranch_scc1 {L("LAST")}',
      f'buffer_store_dword v{MSL}, v{VP}, {WS}, {sMP} offen{sc}', f's_xor_b32 {sMP}, {sMP}, 0x2000', *zero(K1, 8))
    e(*pl[npr:], *nop(opt.get('t_md1', 0)), *mpoll(), *nop(opt.get('t_md2', 28)), *dup(mpoll()))
    if st:
        e(*stamp(7), 's_waitcnt lgkmcnt(0)')
        for k in range(8): e(f'v_writelane_b32 v{T0}, s{STS+2*k}, {k}')
        e(f'v_writelane_b32 v{T0}, s90, 8', f'v_writelane_b32 v{T0}, s91, 9')
        e(f's_lshl_b32 s33, {sS}, 6', 's_add_u32 s33, s33, s61', f'v_lshrrev_b32 v{T1}, 2, v{L16}', 's_mov_b64 exec, 0xffff',
          f'buffer_store_dword v{T0}, v{T1}, {WS}, s33 offen', 's_mov_b64 exec, -1')
    e(f's_branch {L("STEP")}')
    e(f'{L("LAST")}:', f'buffer_store_dword v{MSL}, v{VP}, {WS}, {sHI} offen sc1', 's_waitcnt vmcnt(0)', 's_endpgm')
    for nm, poll, r in (('M', mpoll, M), ('R', rpoll, RP)):
        e(f'{L(nm + "RETRY")}:')
        if opt.get('t_mask', 1): e('s_mov_b64 exec, vcc')
        e(*dup(poll()), f's_sub_u32 {sBUD}, {sBUD}, 1', 's_cbranch_scc1 GIVEUP', 's_waitcnt vmcnt(2)')
        check(r, L(nm + 'RETRY'))
        e('s_mov_b64 exec, -1', f's_branch {L(nm + "OK")}')
    e(f'{L("FRETRY")}:', f'buffer_load_dword v{FLG}, off, {WS}, {sFL} sc1', 's_waitcnt vmcnt(0)', f'v_cmp_ne_u32 vcc, 0, v{FLG}', f's_cbranch_vccnz {L("FOK")}')
    g.retry(L('FRETRY'), 1)


def team_role(g):
    e = g.e
    team_setup(g)
    g.dump('w', [f'a{i}' for i in range(256)] + [f'v{i}' for i in range(128, 256)], L16, T0)
    g.wait_ready(20, 21, 22)
    e(f's_cmp_lg_u32 {sMODE}, 0', 's_cbranch_scc1 TS_ENTRY')
    team_loop(g, 'F')
    team_loop(g, 'S')
```

```python
import sys, os, json
sys.path.insert(0, os.path.dirname(os.path.abspath(__file__)))
from common import *
import asmlib
import team

REF = 'cdna_kernels/' + NAME[:-len('_kernel')] + '.s.ref'


def header():
    out = []
    for l in open(REF).read().split('\n'):
        if l.startswith('; @launch'): break
        out.append(l)
    out.append('; @launch grid=(256,1,1) block=(256,1,1) lds=163840')
    out += ['.amdgcn_target "amdgcn-amd-amdhsa--gfx950"', '.text', f'.globl {NAME}', '.p2align 8', f'.type {NAME},@function', f'{NAME}:']
    return out


def footer():
    return ['.section .rodata,"a"', '.p2align 6', f'.amdhsa_kernel {NAME}', '  .amdhsa_next_free_vgpr 512', '  .amdhsa_next_free_sgpr 102',
            '  .amdhsa_accum_offset 256', '  .amdhsa_group_segment_fixed_size 0', '  .amdhsa_kernarg_size 128', '  .amdhsa_user_sgpr_count 2',
            '  .amdhsa_user_sgpr_kernarg_segment_ptr 1', '  .amdhsa_system_sgpr_workgroup_id_x 1', '.end_amdhsa_kernel']


def generate(opt=None, verbose=False):
    opt = opt or {}
    roles = opt.get('roles', 'taf')
    g = Gen(opt)
    e = g.e
    g.prologue()
    e(f'v_mov_b32 v113, {OOB}')
    e(f's_cmp_gt_u32 {sX}, {NATT}', 's_cbranch_scc1 FFN_ROLE', f's_cmp_lg_u32 {sX}, 0', 's_cbranch_scc1 ATT_LOAD')
    team.team_init(g)
    e('ATT_LOAD:')
    if 'a' not in roles: e(f's_cmp_lg_u32 {sX}, 0', 's_cbranch_scc1 IDLE_ROLE')
    if 't' not in roles: e(f's_cmp_eq_u32 {sX}, 0', 's_cbranch_scc1 IDLE_ROLE')
    g.load_attn_weights('A')
    e(f's_cmp_lg_u32 {sX}, 0', 's_cbranch_scc1 ATT_ROLE')
    team.team_role(g)
    e('ATT_ROLE:')
    if 'a' in roles:
        import att
        att.att_role(g)
    else: e('s_endpgm')
    e('FFN_ROLE:')
    if 'f' in roles:
        import ffn
        ffn.ffn_role(g)
    e('IDLE_ROLE:', 's_waitcnt vmcnt(0)', 's_barrier')
    g.signal_ready(10)
    e('s_waitcnt vmcnt(0)', 'GIVEUP:', 's_endpgm')
    g.L += g.tail
    lines, npad = asmlib.fix_hazards(g.L, verbose)
    errs = asmlib.check_waits(lines)
    for x in errs[:8]: print('WAIT?', x, file=sys.stderr)
    if verbose: print('padding', npad, 'lines', len(lines), file=sys.stderr)
    body = [l if l.endswith(':') else '  ' + l for l in lines]
    return '\n'.join(header() + body + footer()) + '\n'


if __name__ == '__main__':
    opt = json.loads(sys.argv[2]) if len(sys.argv) > 2 else {}
    open(sys.argv[1], 'w').write(generate(opt, True))
```

```python
from common import *

HLDS, KBUF, QBUF, MBUF, KMB, SCR, WQB = 0, 0, 8192, 16384, 24576, 28672, 32768
OBUF = MBUF
T0, VG, WQ0, HB0, MB1, L16, KMW, KMR, IDX, OWA, PST, HG, RLD, XC, SEED, FLA = 0, 1, 2, 6, 10, 13, 14, 15, 16, 17, 18, 19, 20, 21, 22, 23
T1, T2, T3, T4 = 24, 25, 26, 27
GA, CB, SB = 122, 124, 126
WO = 128
sPR, sA, sN, sC, sPB, sRB, sGF, sNX, sNEG = [f's{i}' for i in range(41, 50)]
sHB = 's[50:51]'
CM = [f's[{64+2*r}:{65+2*r}]' for r in range(4)]
RX = RA


def lane_consts(g, lane, lam, grp):
    e = g.e
    e(f'v_lshlrev_b32 v{L16}, 4, v{lane}', f'v_and_b32 v{lam}, 15, v{lane}', f'v_lshrrev_b32 v{grp}, 4, v{lane}', f's_lshl_b32 s33, {sW}, 8')
    e(f'v_lshlrev_b32 v28, 17, v{grp}', f'v_lshlrev_b32 v29, 4, v{lam}', f'v_add3_u32 v{PST}, v28, v29, s33',
      f'v_lshlrev_b32 v28, 10, v{grp}', f'v_add3_u32 v{RLD}, v28, v29, s33')
    e(f'v_lshrrev_b32 v28, 3, v{lane}', 'v_lshlrev_b32 v28, 10, v28', f'v_and_b32 v29, 7, v{lane}', f'v_xor_b32 v29, v29, v{grp}', 'v_lshlrev_b32 v29, 4, v29',
      f'v_add_u32 v{HG}, v28, v29')
    e(f'v_lshrrev_b32 v28, 1, v{grp}', 'v_lshlrev_b32 v28, 7, v28', f'v_lshlrev_b32 v30, 3, v{lam}', 'v_add3_u32 v28, v28, v30, s33',
      f'v_and_b32 v30, 1, v{grp}', 'v_lshlrev_b32 v30, 2, v30', f'v_add_u32 v{XC}, v28, v30', f'v_and_b32 v29, 3, v{lam}')
    sel_setup(g, 29, SEED, 30, 31)
    e(f'v_and_b32 v28, 31, v{lane}', f'v_lshlrev_b32 v{FLA}, 2, v28')
    e(f's_lshl_b32 s33, {sX}, 21', f's_add_u32 s33, s33, {INB2}', f's_lshl_b32 s34, {sT}, 10', f's_add_u32 {sPB}, s33, s34',
      f's_lshl_b32 s34, {sT}, 15', f's_add_u32 {sRB}, s33, s34',
      f's_lshl_b32 s33, {sX}, 9', f's_lshl_b32 s34, {sW}, 7', 's_add_u32 s33, s33, s34', f's_add_u32 {sGF}, s33, {GFLAG}', f's_mov_b32 {sN}, 0')


def row_base(g, dst, lam, grp):
    g.e(f'v_lshrrev_b32 v28, 1, v{lam}', f'v_xor_b32 v28, v28, v{grp}', 'v_lshlrev_b32 v28, 4, v28', f'v_lshlrev_b32 v29, 7, v{lam}', f'v_add_u32 v{dst}, v28, v29')


def gather_rows(g, sbase, lbase=None, emit=True):
    e = g.e
    e(f's_lshl_b32 s34, {sW}, 8', f's_add_u32 s34, s34, {sbase}', f's_lshl_b32 s35, {sW}, 13')
    if lbase: e(f's_add_u32 s35, s35, {lbase}')
    G = []
    for par in range(2):
        for n in range(4):
            b2, ro = n // 2, 2 * (n % 2) + par
            G += [[f's_add_u32 s39, s34, {ro*8192 + b2*128}', f's_add_u32 m0, s35, {HLDS + b2*4096 + ro*1024}'],
                  [f'buffer_load_dwordx4 v{HG}, {WS}, s39 offen sc1 lds']]
        G[-1] = G[-1] + [f'v_xor_b32 v{HG}, 64, v{HG}']
    if not emit: return G
    for x in G: e(*x)


def proj_out(g, wfrag, nk, OF, ACC, PK, sc, fill=()):
    e = g.e
    pend = []
    for tt in range(2):
        A = ACC[tt]
        mf = [mf32(A + 4*d, OF + 4*(tt*nk + k), wfrag(d, k), A + 4*d if k else None) for k in range(nk) for d in range(8)]
        per = -(-len(pend) // max(len(mf) - 4, 1))
        for i, m in enumerate(mf):
            e(m)
            if fill: e(*fill[0]); fill = fill[1:]
            if i >= 2: e(*pend[:per]); pend = pend[per:]
        e(*pend)
        pend = []
        for r in range(4):
            P = PK + 4 * (r % 2)
            pend += [cvt(P + q, A + 8*q + r, A + 8*q + 4 + r) for q in range(4)]
            pend += [f's_add_u32 s36, {sPB}, {(16*tt + r)*32768}\nbuffer_store_dwordx4 {vr(P, 4)}, v{PST}, {WS}, s36 offen{sc}']
    e(*pend)


def signal_group(g, sc, after=0):
    e = g.e
    e(f's_add_u32 {sN}, {sN}, 1', f's_lshl_b32 s33, {sT}, 2', f's_add_u32 s33, s33, {sGF}', f'v_mov_b32 v{T0}, {sN}', f's_waitcnt vmcnt({after})',
      's_mov_b64 exec, 1', f'buffer_store_dword v{T0}, off, {WS}, s33{sc}', 's_mov_b64 exec, -1', f's_xor_b32 {sPB}, {sPB}, 0x100000')


def group_poll(reg):
    return f'buffer_load_dword v{reg}, v{FLA}, {WS}, {sGF} offen sc1'


def group_wait(g, tag, reg, first=True):
    e = g.e
    l = g.lab(tag + 'GP'); ok = g.lab(tag + 'GPOK')
    if not first: e(f'v_cmp_gt_u32 vcc, {sN}, v{reg}', f's_cbranch_vccz {ok}')
    e(f'{l}:', group_poll(reg), 's_waitcnt vmcnt(0)', f'v_cmp_gt_u32 vcc, {sN}, v{reg}', f's_cbranch_vccz {ok}')
    g.retry(l, 1, 4)
    e(f'{ok}:')


def part_loads(g, R, last=None):
    e = g.e
    for i, r in enumerate(R):
        a = last if (last is not None and i == len(R) - 1) else RLD
        if i: e(f's_add_u32 s36, {sRB}, {i*4096}')
        e(f'buffer_load_dwordx4 {vr(r, 4)}, v{a}, {WS}, {"s36" if i else sRB} offen sc1')
    e(f's_xor_b32 {sRB}, {sRB}, 0x100000')


def part_sum(g, R, SEL, RD_, after=0):
    for i, r in enumerate(R):
        if after is not None: g.e(f's_waitcnt vmcnt({len(R) - 1 - i + after})')
        g.e(mf32(RD_, SEL, r, RD_ if i else None))


def att_setup(g):
    e = g.e
    lane, lam, grp = T4, T3, T2
    e(f'v_mov_b32 v{lane}, v0')
    g.srd(RX, P_X, 2 * MB)
    lane_consts(g, lane, lam, grp)
    e(f's_lshl_b32 s33, {sW}, 11', f'v_add_u32 v{VG}, s33, v{L16}')
    row_base(g, 32, lam, grp)
    for p in range(4):
        e(f's_add_u32 s33, {sW}, {p}', 's_and_b32 s33, s33, 3', 's_lshl_b32 s34, s33, 13', f'v_add_u32 v{HB0+p}, s34, v32')
        if p: e('s_lshl_b32 s34, s33, 11', f'v_add_u32 v{MB1+p-1}, s34, v{L16}')
        e('s_lshl_b32 s33, s33, 15', f's_lshl_b32 s34, {sW}, 12', 's_add_u32 s33, s33, s34', f's_add_u32 s33, s33, {WQB}', f'v_add_u32 v{WQ0+p}, s33, v{L16}')
    e(f'v_lshrrev_b32 v28, 2, v{lam}', f'v_xor_b32 v29, v{grp}, v28', 'v_lshlrev_b32 v29, 3, v29', f'v_lshlrev_b32 v30, 5, v{lam}',
      f's_lshl_b32 s33, {sW}, 10', f's_add_u32 s33, s33, {KMB}', f'v_add3_u32 v{KMW}, v29, v30, s33',
      f'v_lshlrev_b32 v29, 2, v{grp}', 'v_add_u32 v29, v29, v28', 'v_lshlrev_b32 v29, 5, v29', f'v_and_b32 v30, 3, v{lam}', f'v_xor_b32 v31, v30, v{grp}',
      'v_lshlrev_b32 v31, 3, v31', f's_mov_b32 s33, {KMB}', f'v_add3_u32 v{KMR}, v29, v31, s33',
      'v_mov_b32 v28, 0x44444444', 'v_mov_b32 v29, 0xeeeeeeee', 'v_cmp_lt_u32 vcc, 1, v30', f'v_cndmask_b32 v{IDX}, v28, v29, vcc')
    e(f'v_lshlrev_b32 v28, 9, v{grp}', f'v_lshlrev_b32 v29, 4, v{lam}', f's_lshr_b32 s33, {sW}, 1', 's_lshl_b32 s33, s33, 11', f's_and_b32 s34, {sW}, 1',
      's_lshl_b32 s34, s34, 2', 's_add_u32 s33, s33, s34', f's_add_u32 s33, s33, {OBUF}', f'v_add3_u32 v{OWA}, v28, v29, s33')
    for r in range(4):
        e(f'v_lshlrev_b32 v28, 2, v{grp}', f'v_add_u32 v28, {r}, v28', f'v_cmp_ge_u32 {CM[r]}, v{lam}, v28')
    e(f's_sub_u32 {sA}, {sX}, 1', f's_mov_b32 {sPR}, 0', f's_mov_b32 {sC}, 0x3e0293ee', f's_mov_b32 {sNEG}, 0xf149f2ca',
      f's_mov_b64 {sHB}, 0')


VXR, X00, X01, X11, SM0, SM1 = 28, 36, 40, 44, 48, 52
GP, XR = 108, 120
RP = [56, 60, 64, 68, 72, 92, 96, 100]


def h_wait(g, L, tag, seg):
    e = g.e
    e(f's_bitcmp1_b64 {sHB}, {seg}', f's_cbranch_scc1 {L(tag + "OK")}', f'{L(tag)}:',
      f'buffer_load_dwordx2 v[24:25], off, {DBG}, 0 offset:{DB_HBITS*4} sc1', 's_waitcnt vmcnt(0)', 'v_readfirstlane_b32 s50, v24', 'v_readfirstlane_b32 s51, v25',
      f's_bitcmp1_b64 {sHB}, {seg}', f's_cbranch_scc1 {L(tag + "OK")}')
    g.retry(L(tag), 2, 1)
    e(f'{L(tag + "OK")}:', f's_lshl_b32 s33, {seg}, 15', f's_add_u32 s33, s33, {HBUF}')


def finish_row(g):
    e = g.e
    SEL = 76; RD_ = 80
    a, b = RD_, RD_ + 1
    X1P = 86; MEAN = 88; M2 = 89; C = 104
    e(*unpack(XR, XR+1, XR), *rnd2(a, b, T0), f'v_mul_f32 v{a}, v{a}, v{GA}', f'v_mul_f32 v{b}, v{b}, v{GA+1}', *rnd2(a, b, T0),
      f'v_add_f32 v{a}, v{a}, v{XR}', f'v_add_f32 v{b}, v{b}, v{XR+1}', cvt(X1P, a, b), *unpack(a, b, X1P),
      f's_add_u32 s34, {sPR}, {X1BUF}', f'buffer_store_dword v{X1P}, v{XC}, {WS}, s34 offen sc1',
      f'v_add_f32 v{MEAN}, v{a}, v{b}', *wave_sum([MEAN], [T0]), f'v_mul_f32 v{MEAN}, 0x3c000000, v{MEAN}',
      f'v_sub_f32 v{T1}, v{a}, v{MEAN}', f'v_sub_f32 v{T2}, v{b}, v{MEAN}', f'v_mul_f32 v{M2}, v{T1}, v{T1}', f'v_fmac_f32 v{M2}, v{T2}, v{T2}',
      *wave_sum([M2], [T0]), f's_lshl_b32 s33, {sW}, 3', f's_add_u32 s33, s33, {SCR}', f'v_mov_b32 v{T0}, s33', f'v_mov_b32 v{T1}, {SCR}',
      's_mov_b64 exec, 1', f'ds_write_b64 v{T0}, {vr(MEAN,2)}', 's_mov_b64 exec, -1', 's_waitcnt lgkmcnt(0)', 's_barrier',
      f'ds_read_b128 {vr(C,4)}, v{T1}', f'ds_read_b128 {vr(C+4,4)}, v{T1} offset:16', 's_waitcnt lgkmcnt(0)',
      f'v_add_f32 v{MEAN}, v{C}, v{C+2}', f'v_add_f32 v{T0}, v{C+4}, v{C+6}', f'v_add_f32 v{MEAN}, v{MEAN}, v{T0}', f'v_mul_f32 v{MEAN}, 0x3e800000, v{MEAN}',
      f'v_add_f32 v{M2}, v{C+1}, v{C+3}', f'v_add_f32 v{T0}, v{C+5}, v{C+7}', f'v_add_f32 v{M2}, v{M2}, v{T0}')
    e(*[f'v_sub_f32 v{C+2*k}, v{C+2*k}, v{MEAN}' for k in range(4)], f'v_mul_f32 v{T0}, v{C}, v{C}', *[f'v_fmac_f32 v{T0}, v{C+2*k}, v{C+2*k}' for k in (1, 2, 3)],
      f'v_fmac_f32 v{M2}, 0x43000000, v{T0}')
    e(*ln_finish(a, b, MEAN, M2, T0), f'v_sub_f32 v{a}, v{a}, v{MEAN}', f'v_sub_f32 v{b}, v{b}, v{MEAN}', *rnd2(a, b, T0),
      f'v_mul_f32 v{a}, v{a}, v{M2}', f'v_mul_f32 v{b}, v{b}, v{M2}', *rnd2(a, b, T0), f'v_mul_f32 v{a}, v{a}, v{CB}', f'v_mul_f32 v{b}, v{b}, v{CB+1}', *rnd2(a, b, T0),
      f'v_add_f32 v{a}, v{a}, v{SB}', f'v_add_f32 v{b}, v{b}, v{SB+1}', cvt(a, a, b),
      f's_add_u32 s34, {sPR}, {H2BUF}', f'buffer_store_dword v{a}, v{XC}, {WS}, s34 offen sc1',
      f's_lshr_b32 s37, {sPR}, 6', f's_lshl_b32 s33, {sW}, 2', 's_add_u32 s33, s33, s37', f's_add_u32 s33, s33, {H2FLAG}', f'v_mov_b32 v{T0}, 1',
      's_waitcnt vmcnt(0)', 's_mov_b64 exec, 1', f'buffer_store_dword v{T0}, off, {WS}, s33 sc1', 's_mov_b64 exec, -1')


def qkv(g, L):
    e = g.e
    ACC = 28; OP = 76
    g.rst(8, T0, sN)
    g.cst_flush(sN, T0, T1, L16); g.cst(0)
    def reads(st):
        i, jj = st // 2, st % 2
        b = OP + 16 * (st % 2)
        return [f'ds_read_b128 {vr(b + 8 + 4*t, 4)}, v{WQ0 + i//2} offset:{(i%2)*16384 + t*2048 + jj*1024}' for t in range(2)] + \
               [f'ds_read_b128 {vr(b + 4*tt, 4)}, v{HB0 + i//2} offset:{HLDS + (i%2)*4096 + tt*2048}' for tt in range(2)] + [f'v_xor_b32 v{HB0 + i//2}, 64, v{HB0 + i//2}']
    e(*reads(0)[:2], 's_barrier', *reads(0)[2:], f's_add_u32 {sNX}, {sA}, {NATT}')
    for st in range(16):
        i, jj = st // 2, st % 2
        b = OP + 16 * (st % 2)
        nxt = reads(st + 1) if st < 15 else []
        e('s_waitcnt lgkmcnt(0)')
        if st == 15: e('s_barrier')
        if st == 10: nxt += [group_poll(GP), f'buffer_load_dword v{XR}, v{XC}, {RX}, {sPR} offen']
        if st == 15: nxt = [f's_lshl_b32 s33, {sA}, 18', f's_lshl_b32 s34, {sT}, 13', 's_add_u32 s33, s33, s34', f's_add_u32 s34, s33, {KX}', f's_add_u32 s35, s33, {VX}',
                            f's_lshl_b32 s33, {sT}, 10', f's_lshl_b32 s37, {sA}, 4', 's_add_u32 s33, s33, s37', f's_lshl_b32 s37, {sW}, 2', 's_add_u32 s33, s33, s37',
                            f's_add_u32 s37, s33, {KVFLAG}', 's_waitcnt vmcnt(0)']
        mf = []
        for t in range(2):
            for tt in range(2):
                d = ACC + (t*2 + tt)*4
                mf.append(mf32(d, ar((i*2 + t)*8 + jj*4, 4), b + 4*tt, d if st else None))
        for t in range(2):
            for tt in range(2):
                d = ACC + 32 + (t*2 + tt)*4
                mf.append(mf32(d, b + 4*tt, ar(128 + (i*2 + t)*8 + jj*4, 4), d if st else None))
        for t in range(2):
            for tt in range(2):
                d = ACC + 16 + (t*2 + tt)*4
                mf.append(mf32(d, b + 8 + 4*t, b + 4*tt, d if st else None))
        for n, m in enumerate(mf):
            e(m)
            if n < len(nxt): e(nxt[n])
    g.cst(1)
    for nm, base, PK, so, lds in (('k', 0, OP, 's34', KBUF), ('v', 32, VXR, 's35', None), ('q', 16, OP + 8, None, QBUF)):
        for o in range(2):
            P = PK + 4*o
            for h in range(2):
                d = ACC + base + ((o*2 + h) if nm == 'v' else (h*2 + o)) * 4
                e(cvt(P + 2*h, d, d + 1), cvt(P + 2*h + 1, d + 2, d + 3))
            if so: e(f'buffer_store_dwordx4 {vr(P,4)}, v{VG}, {WS}, {so} offen offset:{o*1024} sc1')
            if lds is not None: e(f'ds_write_b128 v{VG}, {vr(P,4)} offset:{lds + o*1024}')
    g.rst(9, T0, sN)
    e(f's_cmp_eq_u32 {sN}, 0', f's_cbranch_scc1 {L("NP1")}')
    group_wait(g, 'A', GP, first=False)
    part_loads(g, RP)
    e(f'{L("NP1")}:', 's_waitcnt lgkmcnt(0)', 's_barrier')
    F = [76, 104]
    rd = lambda j: [f'ds_read_b128 {vr(F[j % 2] + 8*n + 4*tt, 4)}, v{L16} offset:{B + j*2048 + tt*1024}' for n, B in enumerate((KBUF, QBUF)) for tt in range(2)]
    e(*rd(0), *rd(1))
    for j in range(4):
        K_, Q_ = F[j % 2], F[j % 2] + 8
        e(f's_waitcnt lgkmcnt({4 if j < 3 else 0})', mf32(X00, K_, Q_, X00 if j else None), mf32(X01, K_, Q_ + 4, X01 if j else None),
          mf32(X11, K_ + 4, Q_ + 4, X11 if j else None))
        if j < 2: e(*rd(j + 2))
    g.cst(2)
    flag = [f'v_mov_b32 v{T0}, 1', 's_mov_b64 exec, 1', f'buffer_store_dword v{T0}, off, {WS}, s37 sc1', 's_mov_b64 exec, -1']
    e(f's_cmp_eq_u32 {sN}, 0', f's_cbranch_scc0 {L("PD")}', 's_waitcnt vmcnt(0)', *flag, f's_branch {L("GO")}',
      f'{L("PD")}:', *sel_build(76, SEED), 's_waitcnt vmcnt(8)', *flag)
    g.cst(3)
    part_sum(g, RP, 76, 80, after=1)
    finish_row(g)
    g.cst(4)
    e(f'{L("GO")}:', f's_lshl_b32 {sPR}, {sA}, 5', f's_add_u32 {sPR}, {sPR}, {sT}', f's_lshl_b32 {sPR}, {sPR}, 10')


def attention(g, L, sc):
    e = g.e
    e(f's_lshl_b32 s37, {sW}, 11')
    M = 56; K0, K1, V0, V1 = 88, 92, 96, 100
    e(f's_lshl_b32 s38, {sA}, 13', f's_add_u32 s38, s38, {MHIST}', f's_cmp_eq_u32 {sA}, 0', f's_cbranch_scc1 {L("MP")}',
      f's_sub_u32 s33, s38, 8192', f's_add_u32 s33, s33, s37',
      f'{L("LP")}:', f'buffer_load_dword v{T0}, off, {WS}, s33 sc1', 's_waitcnt vmcnt(0)', f'v_cmp_ne_u32 vcc, -1, v{T0}', f's_cbranch_vccnz {L("MP")}')
    g.retry(L('LP'), 8, 2)
    e(f'{L("MP")}:', f'buffer_load_dwordx4 {vr(M,4)}, v{VG}, {WS}, s38 offen sc1', f'buffer_load_dwordx4 {vr(M+4,4)}, v{VG}, {WS}, s38 offen offset:1024 sc1',
      's_waitcnt vmcnt(0)',
      f'v_max3_u32 v{T0}, v{M}, v{M+1}, v{M+2}', f'v_max3_u32 v{T1}, v{M+3}, v{M+4}, v{M+5}', f'v_max_u32 v{T0}, v{T0}, v{M+6}',
      f'v_max3_u32 v{T0}, v{T0}, v{T1}, v{M+7}', f'v_cmp_eq_u32 vcc, -1, v{T0}', f's_cbranch_vccz {L("MOK")}')
    g.retry(L('MP'), g.opt.get('a_msleep', 2), 3)
    e(f'{L("MOK")}:')
    g.rst(10, T0, sN)
    g.cst(5)
    e(f'ds_write_b128 v{VG}, {vr(M,4)} offset:{MBUF}', f'ds_write_b128 v{VG}, {vr(M+4,4)} offset:{MBUF+1024}', *zero(K0, 16))
    e(f'v_mov_b32 v{T1}, {sNEG}')
    for r in range(4): e(f'v_cndmask_b32 v{X00+r}, v{T1}, v{X00+r}, {CM[r]}', f'v_cndmask_b32 v{X11+r}, v{T1}, v{X11+r}, {CM[r]}')
    e('s_waitcnt lgkmcnt(0)', 's_barrier')
    e(*[f'ds_read_b128 {vr(M + 4*i, 4)}, v{MB1 + i//2 - 1} offset:{MBUF + (i%2)*1024}' for i in range(2, 8)])
    wk = lambda i, t: ar((i*2 + t)*8, 8)
    wv = lambda i, t: ar(128 + (i*2 + t)*8, 8)
    for i in range(8):
        if i >= 2: e(f's_waitcnt lgkmcnt({7 - i})')
        e(smf(K0, M + 4*i, wk(i, 0), IDX), smf(K1, M + 4*i, wk(i, 1), IDX))
    for i in range(8):
        e(smf(V0, M + 4*i, wv(i, 0), IDX), smf(V1, M + 4*i, wv(i, 1), IDX))
        if i == 1: e(f'v_add_f32 v{K0}, v{K0}, v{K0+2}', f'v_add_f32 v{K0+1}, v{K0+1}, v{K0+3}')
        if i == 2: e(f'v_add_f32 v{K1}, v{K1}, v{K1+2}', f'v_add_f32 v{K1+1}, v{K1+1}, v{K1+3}')
        if i == 3: e(cvt(K0, K0, K0+1), cvt(K1, K1, K1+1))
        if i == 4: e(f'ds_write_b32 v{KMW}, v{K0}', f'ds_write_b32 v{KMW}, v{K1} offset:512')
    QF = 56; KM = 104; VM = 96
    g.cst(6)
    e('s_waitcnt lgkmcnt(0)', 's_barrier')
    for j in range(4):
        e(*[f'ds_read_b64_tr_b16 {vr(KM + 4*j + 2*u, 2)}, v{KMR} offset:{j*1024 + u*512}' for u in range(2)],
          *[f'ds_read_b128 {vr(QF + 8*j + 4*tt, 4)}, v{L16} offset:{QBUF + j*2048 + tt*1024}' for tt in range(2)])
    e(f'v_add_f32 v{V0}, v{V0}, v{V0+2}', f'v_add_f32 v{V0+1}, v{V0+1}, v{V0+3}', f'v_add_f32 v{V1}, v{V1}, v{V1+2}', f'v_add_f32 v{V1+1}, v{V1+1}, v{V1+3}',
      cvt(VM, V0, V0+1), cvt(VM+1, V1, V1+1), *zero(VM+2, 2))
    for j in range(4):
        e(f's_waitcnt lgkmcnt({12 - 4*j})', mf32(SM0, KM + 4*j, QF + 8*j, SM0 if j else None), mf32(SM1, KM + 4*j, QF + 8*j + 4, SM1 if j else None))
    P0, P1, PA0, PB0, PA1, PB1, ONES, SUM0, SUM1, O = 56, 60, 64, 68, 72, 76, 80, 84, 88, 104
    e(f'v_max3_f32 v{T0}, v{X00}, v{X00+1}, v{X00+2}', f'v_max3_f32 v{T1}, v{X01}, v{X01+1}, v{X01+2}', f'v_max3_f32 v{T2}, v{X01+3}, v{X11}, v{X11+1}',
      f'v_max3_f32 v{T1}, v{T1}, v{X11+2}, v{X11+3}', f'v_max_f32 v{T0}, v{T0}, v{X00+3}', f'v_max_f32 v{T1}, v{T1}, v{T2}',
      *zero(P0+2, 2), *zero(PA0, 16), f'v_mov_b32 v{ONES}, 0x3f803f80', f'v_mov_b32 v{ONES+1}, 0x3f803f80', f'v_mov_b64 {vr(ONES+2,2)}, {vr(ONES,2)}',
      f'v_max3_f32 v{T0}, v{T0}, v{SM0}, v{SM0+1}', f'v_max3_f32 v{T1}, v{T1}, v{SM1}, v{SM1+1}',
      *cross_rows('v_max_f32', [T0, T1], [T2, T3]), f'v_mul_f32 v{T0}, {sC}, v{T0}', f'v_mul_f32 v{T1}, {sC}, v{T1}')
    q0 = [X00+r for r in range(4)] + [SM0, SM0+1]
    q1 = [X01+r for r in range(4)] + [X11+r for r in range(4)] + [SM1, SM1+1]
    for regs, t in ((q0, T0), (q1, T1)): e(*[f'v_fma_f32 v{r}, v{r}, {sC}, -v{t}' for r in regs])
    e(*[f'v_exp_f32 v{r}, v{r}' for r in q0 + q1])
    e(cvt(P0, X00, X00+1), cvt(P0+1, X00+2, X00+3), cvt(PA0, SM0, SM0+1), cvt(PB0+1, SM0, SM0+1),
      cvt(P1, X01, X01+1), cvt(P1+1, X01+2, X01+3), cvt(P1+2, X11, X11+1), cvt(P1+3, X11+2, X11+3), cvt(PA1, SM1, SM1+1), cvt(PB1+1, SM1, SM1+1))
    e(mf32(SUM0, ONES, P0, None), mf32(SUM1, ONES, P1, None), mf32(SUM0, ONES, PA0, SUM0), mf32(SUM1, ONES, PA1, SUM1))
    for tt, (P, PA, PB) in enumerate(((P0, PA0, PB0), (P1, PA1, PB1))):
        e(mf32(O + 8*tt, VXR, P, None), mf32(O + 8*tt + 4, VXR + 4, P, None), mf32(O + 8*tt, VM, PA, O + 8*tt), mf32(O + 8*tt + 4, VM, PB, O + 8*tt + 4))
        if tt == 0: e(f'v_rcp_f32 v{T0}, v{SUM0}', f'v_rcp_f32 v{T1}, v{SUM1}')
    for tt in range(2):
        for t in range(2):
            o = O + 8*tt + 4*t
            e(*[f'v_mul_f32 v{o+r}, v{o+r}, v{(T0, T1)[tt]}' for r in range(4)], cvt(o, o, o+1), cvt(o+1, o+2, o+3),
              f'ds_write_b32 v{OWA}, v{o} offset:{tt*4096 + t*256}', f'ds_write_b32 v{OWA}, v{o+1} offset:{tt*4096 + t*256 + 8}')
    OF = 56
    g.cst(7)
    e('s_waitcnt lgkmcnt(0)', 's_barrier', *[f'ds_read_b128 {vr(OF + 4*n, 4)}, v{L16} offset:{OBUF + n*1024}' for n in range(8)], 's_waitcnt lgkmcnt(0)')
    g.dump('ao', [f'v{i}' for i in range(1, 128)], L16, T0)
    wo = lambda d, k: WO + (d*2 + k//2)*8 + (k % 2)*4
    e(f's_cmp_ge_u32 {sNX}, 64', f's_cbranch_scc1 {L("FIN")}')
    h_wait(g, L, 'HN', sNX)
    G = gather_rows(g, 's33', emit=False)
    e('s_barrier')
    g.cst(8)
    proj_out(g, wo, 4, OF, (88, 28), 60, sc, fill=G)
    g.cst(9)
    g.rst(11, T0, sN)
    signal_group(g, sc)
    g.cst(10)
    e(f's_mov_b32 {sA}, {sNX}', f's_branch {L("LOOP")}')
    e(f'{L("FIN")}:', f'buffer_load_dword v{XR}, v{XC}, {RX}, {sPR} offen')
    g.cst(8)
    proj_out(g, wo, 4, OF, (88, 28), 60, sc)
    g.cst(9)
    g.rst(11, T0, sN)
    signal_group(g, sc)
    g.cst(10)
    e(*sel_build(76, SEED))
    group_wait(g, 'A', T0)
    g.cst(2)
    part_loads(g, RP)
    part_sum(g, RP, 76, 80)
    g.cst(3)
    finish_row(g)
    g.cst(4)
    g.cst_flush(sN, T0, T1, L16)


def att_loop(g, mode):
    e = g.e
    sc = ' sc1' if mode == 'S' else ''
    L = lambda n: f'A{mode}_{n}'
    e(f'{L("ENTRY")}:')
    h_wait(g, L, 'H0', sA)
    gather_rows(g, 's33')
    g.rst(4, T0); g.dbgt(12, T0, 1)
    e(f'v_lshlrev_b32 v{T1}, 1, v{XC}')
    for r, k in ((GA, 2), (CB, 4), (SB, 3)):
        e(f's_mov_b32 s33, {MOD + k*2048}', f'buffer_load_dwordx2 {vr(r,2)}, v{T1}, {WS}, s33 offen sc1')
    e('s_waitcnt vmcnt(0)', f'{L("LOOP")}:')
    qkv(g, L)
    attention(g, L, sc)
    e('s_waitcnt vmcnt(0)')
    g.rst(5, T0); g.clk(T0); g.dbgt(13, T0, 4); e('s_waitcnt vmcnt(0)')
    e('s_endpgm')


def att_role(g):
    e = g.e
    att_setup(g)
    g.wait_ready(T4, T1, T2)
    e(f's_cmp_lg_u32 {sMODE}, 0', 's_cbranch_scc1 AS_ENTRY')
    att_loop(g, 'F')
    att_loop(g, 'S')
```

```python
from layout import *

NAME = "adaLN_cond__memory_aug_recurrent_mem_tr__glu_gated_swiglu__prompt_kernel"

sW, sX, sT, sBUD, sMODE = 's3', 's4', 's5', 's6', 's7'
WS = 's[8:11]'
DBG = 's[12:15]'
RA = 's[16:19]'; RB = 's[20:23]'; RC = 's[24:27]'; RD = 's[28:31]'
sOVF = 's32'
P_X, P_MEM0, P_WQ, P_WK, P_WV, P_WO, P_SEG, P_BX, P_W1, P_W3, P_W2, P_C, P_WMOD, P_OUT, P_DBG, P_WS = [64 + 2 * i for i in range(16)]


def vr(a, n=1):
    return f'v{a}' if n == 1 else f'v[{a}:{a + n - 1}]'


def ar(a, n=1):
    return f'a{a}' if n == 1 else f'a[{a}:{a + n - 1}]'


class Gen:
    def __init__(self, opt):
        self.L = []
        self.opt = opt
        self.uid = 0
        self.tail = []

    def e(self, *lines):
        for s in lines:
            for l in s.split('\n'):
                l = l.strip()
                if l: self.L.append(l)

    def lab(self, p):
        self.uid += 1
        return f'{p}_{self.uid}'

    def srd(self, r, ptr, nbytes):
        b = int(r[2:r.index(':')])
        self.e(f's_mov_b32 s{b}, s{ptr}', f's_mov_b32 s{b+1}, s{ptr+1}', f's_mov_b32 s{b+2}, {nbytes}', f's_mov_b32 s{b+3}, 0x00020000')

    def site(self, n):
        return [f's_mov_b32 s60, {n}'] if self.opt.get('diag') else []

    def retry(self, label, sleep=0, site=0):
        self.e(*self.site(site))
        if sleep: self.e(f's_sleep {sleep}')
        self.e(f's_sub_u32 {sBUD}, {sBUD}, 1', 's_cbranch_scc1 GIVEUP', f's_branch {label}')

    def stamp(self, idx_sreg_or_int, slot, tmpv, tmps='s[62:63]'):
        if not self.opt.get('stamps'): return
        lo = tmps[2:tmps.index(':')]
        self.e(f's_memtime {tmps}', 's_waitcnt lgkmcnt(0)', f'v_mov_b32 v{tmpv}, s{lo}')
        if isinstance(idx_sreg_or_int, int):
            self.e(f's_add_u32 s{lo}, s61, {(idx_sreg_or_int * 8 + slot) * 4}')
        else:
            self.e(f's_lshl_b32 s{lo}, {idx_sreg_or_int}, 5', f's_add_u32 s{lo}, s{lo}, s61', f's_add_u32 s{lo}, s{lo}, {slot * 4}')
        self.e(f'buffer_store_dword v{tmpv}, off, {WS}, s{lo}')

    def rst(self, slot, tmpv=0, idx=None, sh=4):
        if not self.opt.get('rst'): return
        self.e('s_memrealtime s[98:99]', 's_waitcnt lgkmcnt(0)', f'v_mov_b32 v{tmpv}, s98')
        if idx is None: self.e('s_mov_b32 s98, s100')
        else: self.e(f's_lshl_b32 s98, {idx}, {sh}', 's_add_u32 s98, s98, s100')
        self.e(f'buffer_store_dword v{tmpv}, off, {WS}, s98 offset:{slot*4}')

    def cst(self, k):
        if self.opt.get('cst'): self.e(f's_memtime s[{72+2*k}:{73+2*k}]')

    def cst_flush(self, idx, t0, t1, l16):
        if not self.opt.get('cst'): return
        e = self.e
        e('s_waitcnt lgkmcnt(0)')
        for k in range(12): e(f'v_writelane_b32 v{t0}, s{72+2*k}, {k}')
        e(f's_lshl_b32 s33, {idx}, 6', 's_add_u32 s33, s33, s61', f'v_lshrrev_b32 v{t1}, 2, v{l16}', 's_mov_b64 exec, 0xffff',
          f'buffer_store_dword v{t0}, v{t1}, {WS}, s33 offen', 's_mov_b64 exec, -1')

    def clk(self, tmpv):
        if not self.opt.get('rst'): return
        self.e('s_memtime s[98:99]', 's_waitcnt lgkmcnt(0)', 's_sub_u32 s98, s98, s101', f'v_mov_b32 v{tmpv}, s98', f'buffer_store_dword v{tmpv}, off, {WS}, s100 offset:28')

    def dump(self, name, regs, l16, tmp):
        if self.opt.get('dump') != name: return
        e = self.e
        e('s_nop 15', 's_waitcnt vmcnt(0) lgkmcnt(0)', f's_lshl_b32 s33, {sX}, 5', f's_add_u32 s33, s33, {sT}', 's_lshl_b32 s33, s33, 19',
          f's_lshl_b32 s34, {sW}, 17', 's_add_u32 s33, s33, s34', f's_add_u32 s33, s33, {DUMP}',
          f'v_mbcnt_lo_u32_b32 v{tmp}, -1, 0', f'v_mbcnt_hi_u32_b32 v{tmp}, -1, v{tmp}', f'v_lshlrev_b32 v{tmp}, 2, v{tmp}')
        for n, r in enumerate(regs):
            e(f'buffer_store_dword {r}, v{tmp}, {WS}, s33 offen', 's_add_u32 s33, s33, 256')
        e('s_waitcnt vmcnt(0)', 's_endpgm')

    def prologue(self):
        e = self.e
        opt = self.opt
        e('s_cmp_ge_u32 s2, 256', 's_cbranch_scc1 EXIT')
        if opt.get('rst'): e('s_memrealtime s[96:97]', 's_memtime s[94:95]', 's_waitcnt lgkmcnt(0)', 's_mov_b32 s101, s94')
        e('s_load_dwordx16 s[64:79], s[0:1], 0', 's_load_dwordx16 s[80:95], s[0:1], 64')
        e(f's_getreg_b32 {sX}, hwreg(HW_REG_XCC_ID,0,4)')
        e('v_lshrrev_b32 v1, 6, v0', 'v_and_b32 v0, 63, v0', f'v_readfirstlane_b32 {sW}, v1')
        e(f's_and_b32 {sX}, {sX}, 7', f's_mov_b32 {sBUD}, {opt.get("budget", 400000)}', f's_mov_b32 {sOVF}, 0')
        if opt.get('fake_xcc'):
            e(f's_lshr_b32 {sX}, s2, 6', f's_lshl_b32 {sX}, {sX}, 1')
        e('s_waitcnt lgkmcnt(0)')
        self.srd(WS, P_WS, WS_BYTES)
        self.srd(DBG, P_DBG, 256)
        scope = ' sc1' if opt.get('fake_xcc') else ''
        e(f's_cmp_lg_u32 {sW}, 0', 's_cbranch_scc1 TICKET_WAIT')
        e('v_mov_b32 v2, 1', f's_lshl_b32 s33, {sX}, 2', 's_mov_b64 exec, 1',
          f'buffer_atomic_add v2, off, {DBG}, s33 sc0{scope}', 'v_mov_b32 v3, 0', 's_waitcnt vmcnt(0)',
          'ds_write_b32 v3, v2', 's_mov_b64 exec, -1', 's_waitcnt lgkmcnt(0)')
        e('TICKET_WAIT:', 's_barrier', 'v_mov_b32 v3, 0', 'ds_read_b32 v2, v3', 's_waitcnt lgkmcnt(0)',
          f'v_readfirstlane_b32 {sT}, v2', f's_cmp_ge_u32 {sT}, 32', 's_cbranch_scc1 OVERFLOW', 'ROLE_KNOWN:')
        e(f's_lshl_b32 s33, {sX}, 5', f's_add_u32 s33, s33, {sT}')
        if opt.get('rst'):
            e('s_lshl_b32 s100, s33, 12', f's_lshl_b32 s34, {sW}, 10', 's_add_u32 s100, s100, s34', f's_add_u32 s100, s100, {STAMP + 4*MB}',
              'v_mov_b32 v114, s96', f'buffer_store_dword v114, off, {WS}, s100')
            self.rst(1, 114)
        if opt.get('stamps') or opt.get('cst'):
            e(f's_lshl_b32 s61, s33, 14', f's_lshl_b32 s34, {sW}, 12', 's_add_u32 s61, s61, s34', f's_add_u32 s61, s61, {STAMP}')
        e('v_mov_b32 v2, -1', 'v_mov_b32 v3, -1', 'v_lshlrev_b32 v4, 3, v0', f's_lshl_b32 s34, s33, 11', f's_lshl_b32 s35, {sW}, 9',
          's_add_u32 s34, s34, s35', f's_add_u32 s34, s34, {MHIST}', f'buffer_store_dwordx2 v[2:3], v4, {WS}, s34 offen sc1')
        if not opt.get('keep_flags'):
            e('v_mov_b32 v6, 0', 'v_mov_b32 v7, 0', f's_lshl_b32 s34, s33, 9', f's_add_u32 s34, s34, {FLAGS}',
              f's_cmp_lg_u32 {sW}, 0', 's_cbranch_scc1 FLAGS_DONE', f'buffer_store_dwordx2 v[6:7], v4, {WS}, s34 offen sc1', 'FLAGS_DONE:')
        t = []
        a = t.append
        a('OVERFLOW:'); a('s_barrier'); a(f's_cmp_lg_u32 {sW}, 0'); a('s_cbranch_scc1 OVF_WAIT')
        a('v_mov_b32 v2, 1'); a('s_mov_b64 exec, 1'); a(f'buffer_atomic_add v2, off, {DBG}, 0 offset:{DB_OVF*4} sc0 sc1')
        a('s_waitcnt vmcnt(0)'); a('v_readfirstlane_b32 s34, v2'); a('s_mov_b64 exec, -1'); a('v_lshlrev_b32 v4, 2, v0')
        a('OVF_POLL:'); a(f'buffer_load_dword v2, v4, {DBG}, 0 offen offset:128 sc1'); a('s_waitcnt vmcnt(0)')
        a(f'v_readlane_b32 s35, v2, {DB_OVF-32}')
        for x in range(8):
            a(f'v_readlane_b32 s{40+x}, v2, {DB_CNTG-32+x}')
        for x in range(8):
            a(f's_add_u32 s35, s35, s{40+x}')
        a('s_cmp_eq_u32 s35, 256'); a('s_cbranch_scc1 OVF_PICK'); a('s_sleep 8')
        a(f's_sub_u32 {sBUD}, {sBUD}, 1'); a('s_cbranch_scc1 GIVEUP'); a('s_branch OVF_POLL')
        a('OVF_PICK:')
        for x in range(8):
            a(f's_sub_u32 s35, 32, s{40+x}'); a(f's_add_u32 s36, s{40+x}, s34'); a(f's_add_u32 s36, s36, {x*32}')
            a('s_cmp_lt_u32 s34, s35'); a('s_cbranch_scc1 OVF_FOUND'); a('s_sub_u32 s34, s34, s35')
        a('s_branch GIVEUP')
        a('OVF_FOUND:'); a('v_mov_b32 v2, s36'); a('v_mov_b32 v3, 0'); a('ds_write_b32 v3, v2'); a('s_waitcnt lgkmcnt(0)')
        a('OVF_WAIT:'); a('s_barrier'); a('v_mov_b32 v3, 0'); a('ds_read_b32 v2, v3'); a('s_waitcnt lgkmcnt(0)')
        a(f'v_readfirstlane_b32 {sT}, v2'); a(f's_lshr_b32 {sX}, {sT}, 5'); a(f's_and_b32 {sT}, {sT}, 31')
        a(f's_mov_b32 {sOVF}, 1'); a('s_branch ROLE_KNOWN')
        self.tail += t

    def signal_ready(self, tv):
        l = self.lab('SIG')
        self.e(f's_cmp_lg_u32 {sW}, 0', f's_cbranch_scc1 {l}',
               f's_lshl_b32 s33, {sX}, 2', f's_add_u32 s33, s33, {DB_CNTG*4}', f's_cmp_eq_u32 {sOVF}, 0',
               f's_cselect_b32 s33, s33, {DB_CNTO*4}', f'v_mov_b32 v{tv}, 1', 's_mov_b64 exec, 1',
               f'buffer_atomic_add v{tv}, off, {DBG}, s33 sc1', 's_mov_b64 exec, -1', f'{l}:')

    def wait_ready(self, vlane, t0, t1):
        e = self.e
        l = self.lab('RDY'); ok = self.lab('RDYOK')
        e(f'v_lshlrev_b32 v{t1}, 2, v{vlane}', f'{l}:', f'buffer_load_dword v{t0}, v{t1}, {DBG}, 0 offen offset:128 sc1', 's_waitcnt vmcnt(0)',
          f'v_readlane_b32 {sMODE}, v{t0}, {DB_OVF-32}', f'v_readlane_b32 s33, v{t0}, {DB_CNTO-32}')
        for x in range(8):
            e(f'v_readlane_b32 s34, v{t0}, {DB_CNTG-32+x}', 's_add_u32 s33, s33, s34')
        e(f's_cmp_ge_u32 s33, {self.opt.get("nready", 256)}', f's_cbranch_scc1 {ok}')
        self.retry(l, 4, 5)
        e(f'{ok}:')
        if self.opt.get('force_safe'): e(f's_mov_b32 {sMODE}, 1')
        self.rst(3, t0)

    def load_attn_weights(self, tag):
        e = self.e
        QB = 32768
        self.srd(RA, P_WO, 4 * MB); self.srd(RB, P_WK, 4 * MB); self.srd(RC, P_WV, 4 * MB); self.srd(RD, P_WQ, 4 * MB)
        vO, vD0, vD1, vT = 1, 2, 3, 4
        vWB = 8
        e('v_bfe_u32 v10, v0, 4, 1', 'v_lshlrev_b32 v10, 14, v10', 'v_lshrrev_b32 v11, 5, v0', 'v_lshlrev_b32 v11, 12, v11',
          'v_and_b32 v12, 15, v0', 'v_lshlrev_b32 v13, 3, v12', f's_lshl_b32 s33, {sW}, 8', 'v_add3_u32 v10, v10, v11, v13', f'v_add_u32 v{vO}, s33, v10')
        e('v_lshrrev_b32 v10, 4, v0', 'v_lshrrev_b32 v11, 1, v12', 'v_xor_b32 v11, v11, v10', 'v_lshlrev_b32 v11, 5, v11',
          'v_and_b32 v13, 1, v0', 'v_lshlrev_b32 v13, 4, v13', 'v_lshlrev_b32 v10, 13, v10', 'v_add3_u32 v10, v10, v11, v13',
          f's_lshl_b32 s33, {sW}, 17', f'v_add_u32 v{vD0}, s33, v10', f'v_xor_b32 v{vD1}, 0x80, v{vD0}')
        e('v_bfe_u32 v10, v0, 2, 2', 'v_lshrrev_b32 v11, 4, v0', 'v_lshlrev_b32 v13, 3, v11', 'v_add_u32 v13, v13, v10', 'v_lshlrev_b32 v13, 8, v13',
          'v_and_b32 v11, 1, v11', 'v_lshlrev_b32 v11, 2, v11', 'v_add_u32 v10, v10, v11', f's_lshl_b32 s33, {sW}, 1', 'v_xor_b32 v10, s33, v10',
          'v_lshlrev_b32 v10, 5, v10', 'v_and_b32 v11, 3, v0', 'v_lshlrev_b32 v11, 3, v11', 'v_add3_u32 v10, v10, v11, v13',
          f'v_add_u32 v{vT}, {QB}, v10', f'v_xor_b32 v{vT+1}, 32, v{vT}', f'v_add_u32 v{vT+2}, 0x10000, v{vT}', f'v_add_u32 v{vT+3}, 0x10000, v{vT+1}')
        e(f's_lshl_b32 s33, {sW}, 12', f's_add_u32 s33, s33, {QB}', 'v_lshlrev_b32 v10, 4, v0', f'v_add_u32 v{vWB}, s33, v10', f'v_add_u32 v{vWB+1}, 0x10000, v{vWB}')
        e(f's_lshl_b32 s36, {sT}, 17', f's_lshl_b32 s37, {sT}, 8', f's_lshl_b32 s38, {sW}, 12', f's_add_u32 s38, s38, {QB}',
          's_mov_b32 s39, 0x05040100', 's_mov_b32 s40, 0x07060302')
        items = [('o', c, half, jj) for c in range(2) for half in range(2) for jj in range(2)]
        items += [('w', m, c) for m in 'kvq' for c in range(8)]
        D = 6
        ST = 16
        done = self.lab('LOADED')
        labs = [self.lab(f'LDW{w}') for w in range(4)]
        for w in range(1, 4):
            e(f's_cmp_eq_u32 {sW}, {w}', f's_cbranch_scc1 {labs[w]}')
        for w in range(4):
            e(f'{labs[w]}:')
            nops = [8 if it[0] == 'o' else 4 for it in items]

            def issue(i):
                it = items[i]
                if it[0] == 'o':
                    _, c, half, jj = it
                    base = ST + 16 * (i % D)
                    for ph in range(2):
                        e(f's_add_u32 s33, s36, {(64*c + 8*jj + 32*ph) * 1024}')
                        for y in range(8):
                            if (y // 2) % 2 != ph: continue
                            r = 2 * (y // 4) + y % 2
                            e(f'buffer_load_dwordx2 {vr(base + 2*y, 2)}, v{vO}, {RA}, s33 offen offset:{r*1024 + half*128}')
                else:
                    _, m, c = it
                    R = {'k': RB, 'v': RC, 'q': RD}[m]
                    for j in range(4):
                        e(f's_add_u32 s33, s37, {(64*c + 4*j) * 8192}', f's_add_u32 m0, s38, {c*16384 + j*1024}', 's_nop 0',
                          f'buffer_load_dwordx4 v{vD0 + j//2}, {R}, s33 offen lds')

            def writeback(c, buf):
                for t in range(2):
                    for jj in range(2):
                        e(f'ds_write_b128 v{vWB + c//4}, {vr(buf + t*8 + jj*4, 4)} offset:{(c%4)*16384 + t*2048 + jj*1024}')

            for i in range(D): issue(i)
            for i, it in enumerate(items):
                after = sum(nops[i+1:min(i + D, len(items))])
                e(f's_waitcnt vmcnt({after})')
                if it[0] == 'o':
                    _, c, half, jj = it
                    base = ST + 16 * (i % D)
                    for x in range(4):
                        for yp in range(4):
                            d = 4 * half + x
                            e(f'v_perm_b32 v{128 + (d*2 + c)*8 + jj*4 + yp}, v{base + 2*(2*yp+1) + x//2}, v{base + 2*(2*yp) + x//2}, s{39 + x%2}')
                else:
                    _, m, c = it
                    e('s_barrier')
                    if m == 'k' and c == 0: self.signal_ready(10)
                    slot = (c - 2 * w) % 8
                    if m == 'q' and c > 0: writeback(c - 1, ST + 16 * ((c - 1) % 2))
                    for t in range(2):
                        for jj in range(2):
                            for hh in range(2):
                                if m == 'q': dst = vr(ST + 16 * (c % 2) + t*8 + jj*4 + hh*2, 2)
                                else: dst = ar((0 if m == 'k' else 128) + (slot*2 + t)*8 + jj*4 + hh*2, 2)
                                e(f'ds_read_b64_tr_b16 {dst}, v{vT + t + 2*(c//4)} offset:{(c%4)*16384 + jj*8192 + hh*1024}')
                    e('s_waitcnt lgkmcnt(0)')
                if i + D < len(items): issue(i + D)
            e('s_barrier')
            writeback(7, ST + 16)
            e('s_waitcnt lgkmcnt(0)')
            if w < 3: e(f's_branch {done}')
        e(f'{done}:', 's_barrier')
        self.rst(2, 114)


def smf(d, a, b, idx):
    return f'v_smfmac_f32_16x16x64_bf16 {vr(d,4)}, {vr(a,4)}, {b}, v{idx}'


def opnd(x):
    return x if isinstance(x, str) else vr(x, 4)


def mf32(d, a, b, c):
    return f'v_mfma_f32_16x16x32_bf16 {vr(d,4)}, {opnd(a)}, {opnd(b)}, {vr(c,4) if c is not None else 0}'


def zero(r, n):
    return [f'v_mov_b64 {vr(r+i,2)}, 0' for i in range(0, n, 2)]


def cvt(d, a, b):
    return f'v_cvt_pk_bf16_f32 v{d}, v{a}, v{b}'


def unpack(lo, hi, p):
    return [f'v_and_b32 v{hi}, 0xffff0000, v{p}', f'v_lshlrev_b32 v{lo}, 16, v{p}']


def rnd2(a, b, t):
    return [cvt(t, a, b)] + unpack(a, b, t)


def cross_rows(op, regs, tmps):
    L = []
    for sw in ('v_permlane16_swap_b32', 'v_permlane32_swap_b32'):
        L += [f'v_mov_b32 v{t}, v{r}' for r, t in zip(regs, tmps)]
        L += [f'{sw} v{r}, v{t}' for r, t in zip(regs, tmps)]
        L += [f'{op} v{r}, v{r}, v{t}' for r, t in zip(regs, tmps)]
    return L


def wave_sum(regs, tmps):
    L = []
    for k in (1, 2, 4, 8):
        L += [f'v_add_f32_dpp v{r}, v{r}, v{r} row_ror:{k} row_mask:0xf bank_mask:0xf' for r in regs]
    return L + cross_rows('v_add_f32', regs, tmps)


def sel_setup(g, lam4, seed, t0, t1):
    g.e(f'v_mov_b32 v{t0}, 0x3f80', f'v_mov_b32 v{t1}, 0x3f800000', f'v_cmp_eq_u32 vcc, 0, v{lam4}', f'v_cndmask_b32 v{t0}, v{t1}, v{t0}, vcc',
        f'v_cmp_gt_u32 vcc, 2, v{lam4}', f'v_cndmask_b32 v{seed}, 0, v{t0}, vcc')
    for j in range(4):
        m = 0x000f000f << (4 * j)
        g.e(f's_mov_b32 s{SELM+2*j}, {m:#x}', f's_mov_b32 s{SELM+1+2*j}, {m:#x}')


SELM = 52


def sel_build(sel, seed):
    return [f'v_cndmask_b32 v{sel+j}, 0, v{seed}, s[{SELM+2*j}:{SELM+1+2*j}]' for j in range(4)]


def ln_finish(a, b, mean, m2, t):
    return [f'v_mul_f32 v{m2}, 0x3b000000, v{m2}', *rnd2(mean, m2, t), f'v_add_f32 v{m2}, 0x3727c5ac, v{m2}', cvt(m2, m2, m2), f'v_lshlrev_b32 v{m2}, 16, v{m2}',
            f'v_sqrt_f32 v{m2}, v{m2}', 's_nop 0', cvt(m2, m2, m2), f'v_lshlrev_b32 v{m2}, 16, v{m2}', f'v_rcp_f32 v{m2}, v{m2}']
```

```python
from common import *
from att import (row_base, lane_consts, gather_rows, proj_out, signal_group, group_poll, group_wait, part_loads, part_sum, T0, L16, PST, HG, RLD, XC, SEED, FLA, T1, T2, T3, T4,
                 sN, sPB, sRB, sGF)

RL5, AW, H2F, GB, LB = 1, 2, 3, 4, 6
W2 = 128
ACT = 32768
sS, sI, sPEND, sPRE, sLB, sROW = 's41', 's42', 's44', 's48', 's49', 's50'
sEARLY = 's[64:65]'
NPROD = 22
LOG2E = 0x3fb8aa3b


def pk(op, d, a, b, c=None, sel=None, neg=False):
    n = 3 if c is not None else 2
    s = f'v_pk_{op}_f32 {vr(d,2)}, {vr(a,2)}, {vr(b,2)}' + (f', {vr(c,2)}' if c is not None else '')
    if sel is not None:
        lo = [0] * n; hi = [1] * n
        lo[1] = hi[1] = sel
        s += f' op_sel:[{",".join(map(str, lo))}] op_sel_hi:[{",".join(map(str, hi))}]'
    if neg:
        z = [0] * n; z[1] = 1
        z = ",".join(map(str, z))
        s += f' neg_lo:[{z}] neg_hi:[{z}]'
    return s


def silu(regs, tmps):
    L = [f'v_mul_f32 v{t}, {LOG2E | 0x80000000:#x}, v{r}' for r, t in zip(regs, tmps)]
    L += [f'v_exp_f32 v{t}, v{t}' for t in tmps]
    L += [f'v_add_f32 v{t}, 1.0, v{t}' for t in tmps]
    L += [f'v_rcp_f32 v{t}, v{t}' for t in tmps]
    L += [f'v_mul_f32 v{r}, v{r}, v{t}' for r, t in zip(regs, tmps)]
    return L


def front(g):
    e = g.e
    lane = T4
    X = 64; CV = 96; WM = 128; U = 192; ST = 104; S = 28; ACC = 44
    g.srd(RA, P_X, 2 * MB); g.srd(RB, P_C, 1024); g.srd(RC, P_WMOD, 3 * MB)
    e(f's_sub_u32 {sI}, {sX}, {NATT + 1}', f's_mov_b32 {sS}, {sI}', f's_lshl_b32 {sI}, {sI}, 5', f's_add_u32 {sI}, {sI}, {sT}')
    e(f's_cmp_ge_u32 {sI}, 48', 's_cbranch_scc1 F_NOMOD0')
    e(f'v_lshrrev_b32 v28, 3, v{lane}', f's_lshl_b32 s33, {sW}, 3', 'v_add_u32 v28, s33, v28', 'v_lshlrev_b32 v29, 5, v28',
      f'buffer_load_dwordx4 {vr(CV,4)}, v29, {RB}, 0 offen', f'buffer_load_dwordx4 {vr(CV+4,4)}, v29, {RB}, 0 offen offset:16',
      f's_mov_b32 s33, {16*6144}', 'v_mul_lo_u32 v28, v28, s33', f'v_and_b32 v29, 7, v{lane}', 'v_lshlrev_b32 v29, 4, v29', 'v_add_u32 v28, v28, v29',
      f's_lshl_b32 s33, {sI}, 7')
    for n in range(16):
        e(f'buffer_load_dwordx4 {vr(WM + 4*n, 4)}, v28, {RC}, s33 offen')
        if n < 15: e('s_add_u32 s33, s33, 6144')
    e('F_NOMOD0:', f's_lshl_b32 s37, {sI}, 15', f's_lshl_b32 s34, {sW}, 13', 's_add_u32 s37, s37, s34', 's_add_u32 s34, s37, 4096')
    for r in range(8):
        e(f'buffer_load_dwordx4 {vr(X + 4*r, 4)}, v{L16}, {RA}, {"s37" if r < 4 else "s34"} offen offset:{(r % 4)*1024}')
    e(f's_cmp_ge_u32 {sI}, 48', 's_cbranch_scc1 F_NOMOD1')
    e('s_waitcnt vmcnt(24)', 's_barrier')
    g.signal_ready(T0)
    for k in range(8): e(*unpack(S + 2*k, S + 2*k + 1, CV + k))
    e(*silu(list(range(S, S + 16)), list(range(CV, CV + 8)) + list(range(ST, ST + 8))))
    for k in range(8): e(*rnd2(S + 2*k, S + 2*k + 1, T0))
    for n in range(16):
        e(f's_waitcnt vmcnt({8 + 15 - n})')
        for k in range(4):
            t = ST + 2 * k
            e(*unpack(t, t + 1, WM + 4*n + k))
        for k in range(4):
            t = ST + 2 * k
            e(pk('fma', ACC + 2*k, t, S + 2*(n // 2), ACC + 2*k, sel=n % 2) if n else pk('mul', ACC + 2*k, t, S, sel=0))
    A = list(range(ACC, ACC + 8))
    e(*[f'v_add_f32_dpp v{r}, v{r}, v{r} row_ror:8 row_mask:0xf bank_mask:0xf' for r in A], *cross_rows('v_add_f32', A, list(range(ST, ST + 8))))
    e(f'v_lshlrev_b32 v28, 5, v{lane}', f's_lshl_b32 s33, {sW}, 8', 'v_add_u32 v28, s33, v28', 's_mov_b64 exec, 0xff',
      f'ds_write_b128 v28, {vr(ACC,4)}', f'ds_write_b128 v28, {vr(ACC+4,4)} offset:16', 's_mov_b64 exec, -1', 's_waitcnt lgkmcnt(0)', 's_barrier',
      f's_cmp_lg_u32 {sW}, 0', 's_cbranch_scc1 F_MODDONE', f'v_lshlrev_b32 v28, 2, v{lane}')
    e(*[f'ds_read_b32 v{ACC+k}, v28 offset:{256*k}' for k in range(4)], 's_waitcnt lgkmcnt(0)',
      f'v_add_f32 v{ACC}, v{ACC}, v{ACC+1}', f'v_add_f32 v{ACC+2}, v{ACC+2}, v{ACC+3}', f'v_add_f32 v{ACC}, v{ACC}, v{ACC+2}',
      cvt(ACC, ACC, ACC), f'v_lshlrev_b32 v{ACC}, 16, v{ACC}',
      f's_lshr_b32 s33, {sI}, 3', 's_cmp_eq_u32 s33, 1', 's_cselect_b32 s34, 1.0, 0', 's_cmp_eq_u32 s33, 4', 's_cselect_b32 s34, 1.0, s34',
      f'v_add_f32 v{ACC}, s34, v{ACC}', cvt(ACC, ACC, ACC), f'v_lshlrev_b32 v{ACC}, 16, v{ACC}',
      f's_lshl_b32 s33, {sI}, 8', f's_add_u32 s33, s33, {MOD}', f'buffer_store_dword v{ACC}, v28, {WS}, s33 offen sc1', f'v_mov_b32 v{T0}, 1',
      's_waitcnt vmcnt(0)', 's_mov_b64 exec, 1', f'buffer_atomic_add v{T0}, off, {DBG}, 0 offset:{DB_MODCNT*4} sc1', 's_mov_b64 exec, -1', 's_branch F_MODDONE')
    e('F_NOMOD1:', 's_waitcnt vmcnt(8)', 's_barrier')
    g.signal_ready(T0)
    e('F_MODDONE:', 's_waitcnt vmcnt(0)')
    g.rst(4, T0); g.dbgt(15, T0, 7)
    rows = range(8)
    TT = 28
    for r in rows:
        for k in range(4): e(*unpack(U + 8*r + 2*k, U + 8*r + 2*k + 1, X + 4*r + k))
    e(*[pk('add', TT + 4*r, U + 8*r, U + 8*r + 2) for r in rows], *[pk('add', TT + 4*r + 2, U + 8*r + 4, U + 8*r + 6) for r in rows],
      *[pk('add', TT + 4*r, TT + 4*r, TT + 4*r + 2) for r in rows], *[f'v_add_f32 v{ST + 2*r}, v{TT + 4*r}, v{TT + 4*r + 1}' for r in rows])
    means = [ST + 2*r for r in rows]; m2s = [ST + 2*r + 1 for r in rows]; tm = [TT + r for r in rows]
    e(*wave_sum(means, tm), *[f'v_mul_f32 v{m}, 0x3b000000, v{m}' for m in means])
    for k in range(4):
        e(*[pk('add', TT + 4*r, U + 8*r + 2*k, ST + 2*r, sel=0, neg=True) for r in rows])
        e(*[pk('fma', TT + 4*r + 2, TT + 4*r, TT + 4*r, TT + 4*r + 2) if k else pk('mul', TT + 4*r + 2, TT + 4*r, TT + 4*r) for r in rows])
    e(*[f'v_add_f32 v{ST + 2*r + 1}, v{TT + 4*r + 2}, v{TT + 4*r + 3}' for r in rows], *wave_sum(m2s, tm))
    fin = [[x for x in ln_finish(0, 0, ST + 2*r, ST + 2*r + 1, TT + r) if x != 's_nop 0'] for r in rows]
    for k in range(len(fin[0])): e(*[f[k] for f in fin])
    for r in rows:
        u = [U + 8*r + 2*k for k in range(4)]
        e(*[pk('add', a, a, ST + 2*r, sel=0, neg=True) for a in u], *[cvt(TT + k, a, a + 1) for k, a in enumerate(u)])
        for k, a in enumerate(u): e(*unpack(a, a + 1, TT + k))
        e(*[pk('mul', a, a, ST + 2*r, sel=1) for a in u], *[cvt(TT + k, a, a + 1) for k, a in enumerate(u)])
        for k, a in enumerate(u): e(*unpack(a, a + 1, TT + k))
    g.rst(6, T0)
    e('F_MP:', f'buffer_load_dword v{T0}, off, {DBG}, 0 offset:{DB_MODCNT*4} sc1', 's_waitcnt vmcnt(0)', f'v_cmp_le_u32 vcc, 48, v{T0}', 's_cbranch_vccnz F_MOK')
    g.retry('F_MP', 1, 1)
    SA = 32; CA = 40
    e('F_MOK:', f'v_lshlrev_b32 v{T0}, 1, v{L16}', f'v_lshlrev_b32 v{T1}, 1, v{XC}', f's_mov_b32 s33, {MOD}', f's_mov_b32 s34, {MOD + 5*2048}',
      f'buffer_load_dwordx4 {vr(CA,4)}, v{T0}, {WS}, s33 offen offset:2048 sc1', f'buffer_load_dwordx4 {vr(CA+4,4)}, v{T0}, {WS}, s33 offen offset:2064 sc1',
      f'buffer_load_dwordx4 {vr(SA,4)}, v{T0}, {WS}, s33 offen sc1', f'buffer_load_dwordx4 {vr(SA+4,4)}, v{T0}, {WS}, s33 offen offset:16 sc1',
      f'buffer_load_dwordx2 {vr(GB,2)}, v{T1}, {WS}, s34 offen sc1',
      f's_add_u32 s37, s37, {HBUF}', 's_add_u32 s34, s37, 4096', 's_waitcnt vmcnt(0)')
    for r in rows:
        u = [U + 8*r + 2*k for k in range(4)]
        e(*[pk('mul', a, a, CA + 2*k) for k, a in enumerate(u)], *[cvt(TT + k, a, a + 1) for k, a in enumerate(u)])
        for k, a in enumerate(u): e(*unpack(a, a + 1, TT + k))
        e(*[pk('add', a, a, SA + 2*k) for k, a in enumerate(u)], *[cvt(X + 4*r + k, a, a + 1) for k, a in enumerate(u)],
          f'buffer_store_dwordx4 {vr(X + 4*r, 4)}, v{L16}, {WS}, {"s37" if r < 4 else "s34"} offen offset:{(r % 4)*1024} sc1')
    e(f's_lshr_b32 s33, {sI}, 5', 's_lshl_b32 s33, s33, 2', f's_lshl_b32 s34, 1, {sT}', f'v_mov_b32 v{T0}, s34', 's_waitcnt vmcnt(0)', 's_barrier',
      f's_cmp_lg_u32 {sW}, 0', 's_cbranch_scc1 F_HDONE',
      's_mov_b64 exec, 1', f'buffer_atomic_or v{T0}, off, {DBG}, s33 offset:{DB_HBITS*4} sc1', 's_mov_b64 exec, -1', 'F_HDONE:')
    g.rst(7, T0)


def weights(g):
    e = g.e
    lane = T4
    B1, B3 = 32768, 98304
    g.srd(RA, P_W1, 512 * 2752); g.srd(RB, P_W3, 512 * 2752); g.srd(RC, P_W2, 1376 * 1024)
    e(f's_cmp_ge_u32 {sT}, {NPROD}', 's_cbranch_scc1 F_WDONE')
    e(f's_cmp_eq_u32 {sT}, {NPROD-1}', 's_cselect_b32 s33, 3, 7', f'v_and_b32 v28, s33, v{lane}', 'v_lshlrev_b32 v28, 4, v28', f'v_lshrrev_b32 v29, 3, v{lane}',
      's_mov_b32 s33, 2752', 'v_mul_lo_u32 v29, v29, s33', f's_lshl_b32 s33, {sT}, 7', 'v_add3_u32 v28, v28, v29, s33',
      f's_mul_i32 s34, {sW}, {128*2752}', f's_lshl_b32 s35, {sW}, 14')
    for n in range(16):
        for R, B in ((RA, B1), (RB, B3)):
            e(f's_add_u32 m0, s35, {B + n*1024}', f'buffer_load_dwordx4 v28, {R}, s34 offen lds')
        if n < 15: e(f's_add_u32 s34, s34, {8*2752}')
    e(f'v_lshrrev_b32 v29, 4, v{lane}', 'v_lshlrev_b32 v30, 12, v29', f'v_and_b32 v31, 15, v{lane}', 'v_lshlrev_b32 v32, 3, v31', f's_lshl_b32 s33, {sT}, 16',
      f's_lshl_b32 s34, {sW}, 8', 's_add_u32 s33, s33, s34', 'v_add3_u32 v30, v30, v32, s33', 'v_add_u32 v32, 0x8000, v30', 's_mov_b32 s33, 16384',
      's_mov_b32 s39, 0x05040100', 's_mov_b32 s40, 0x07060302')
    e('v_lshlrev_b32 v33, 3, v29', 'v_lshrrev_b32 v34, 2, v31', 'v_add_u32 v33, v33, v34', 'v_lshlrev_b32 v33, 7, v33', 'v_and_b32 v34, 3, v31', 'v_lshlrev_b32 v34, 3, v34',
      f's_lshl_b32 s34, {sW}, 5', f's_add_u32 s34, s34, {B1}', 'v_add3_u32 v33, v33, v34, s34', f'v_add_u32 v34, {B3 - B1}, v33')
    e('s_waitcnt vmcnt(0)')
    for half in range(2):
        for jj in range(2):
            for y in range(8):
                e(f'buffer_load_dwordx2 {vr(192 + ((half*2 + jj)*8 + y)*2, 2)}, v{30 + 2*jj}, {RC}, {"s33" if y >= 4 else 0} offen offset:{(y % 4)*1024 + half*128}')
    e('s_barrier')
    for m in range(2):
        for kk in range(16):
            for hh in range(2):
                e(f'ds_read_b64_tr_b16 {ar(64*m + 4*kk + 2*hh, 2)}, v{33 + m} offset:{kk*4096 + hh*512}')
            if kk % 4 == 3: e('s_waitcnt lgkmcnt(0)')
    e('s_waitcnt vmcnt(0)')
    for half in range(2):
        for jj in range(2):
            base = 192 + (half*2 + jj)*16
            for x in range(4):
                for yp in range(4):
                    e(f'v_perm_b32 v{W2 + ((4*half + x)*2 + jj)*4 + yp}, v{base + 2*(2*yp+1) + x//2}, v{base + 2*(2*yp) + x//2}, s{39 + x % 2}')
    e('s_barrier', 'F_WDONE:')
    g.rst(2, T0)


def ffn_loop(g, mode):
    e = g.e
    sc = ' sc1' if mode == 'S' else ''
    L = lambda n: f'F{mode}_{n}'
    HF = 28; G = 60; U = 68; OF = 76
    R = [192 + 4*i for i in range(6)]; SEL = 216; RD_ = 220; XR = 224; F1 = 226; F2 = 227
    a, b = RD_, RD_ + 1
    x1load = [f's_add_u32 s37, {sROW}, {X1BUF}', f'buffer_load_dword v{XR}, v{XC}, {WS}, s37 offen sc1']
    finish = [*unpack(XR, XR+1, XR), *rnd2(a, b, T0), pk('mul', a, a, GB), *rnd2(a, b, T0), pk('add', a, a, XR), cvt(a, a, b),
              f'buffer_store_dword v{a}, v{XC}, {RD}, {sROW} offen']
    row = [f's_lshl_b32 {sROW}, {sS}, 5', f's_add_u32 {sROW}, {sROW}, {sT}', f's_lshl_b32 {sROW}, {sROW}, 10', f's_add_u32 {sS}, {sS}, {NFFN}']
    e(f'{L("ENTRY")}:', *sel_build(SEL, SEED), f's_mov_b32 {sPEND}, 0', f's_mov_b32 {sLB}, 0',
      f'{L("LOOP")}:', f's_cmp_ge_u32 {sT}, {NPROD}', f's_cbranch_scc1 {L("SIG")}',
      f's_lshl_b32 s33, {sS}, 9', f's_add_u32 s33, s33, {H2FLAG}',
      f'{L("HP")}:', f'buffer_load_dword v{T0}, v{H2F}, {WS}, s33 offen sc1', 's_waitcnt vmcnt(0)', f'v_cmp_eq_u32 vcc, 0, v{T0}', f's_cbranch_vccz {L("HOK")}')
    g.retry(L('HP'), g.opt.get('f_hsleep', 2), 2)
    e(f'{L("HOK")}:')
    def nextflag(k):
        return [f's_add_u32 s33, {sS}, {k*NFFN}', 's_lshl_b32 s33, s33, 9', f's_add_u32 s33, s33, {H2FLAG}', f's_cmp_ge_u32 {sS}, {64 - k*NFFN}',
                f's_cselect_b32 s33, {ZEROS}, s33', f'buffer_load_dword v{F1}, v{H2F}, {WS}, s33 offen sc1']
    def fetchnext():
        e(f's_mov_b32 {sPRE}, 1', f's_add_u32 s33, {sS}, {NFFN}', 's_lshl_b32 s33, s33, 15', f's_add_u32 s33, s33, {H2BUF}')
        gather_rows(g, 's33', sLB)
    e(f's_lshl_b32 s33, {sS}, 15', f's_add_u32 s33, s33, {H2BUF}')
    gather_rows(g, 's33', sLB)
    e(*nextflag(1), 's_waitcnt vmcnt(0)', f'{L("TOP")}:')
    g.rst(8, T0, sN)
    g.cst_flush(sN, T0, T1, L16); g.cst(0)
    e('s_barrier')
    rd = lambda kk: [f'ds_read_b128 {vr(HF + 8*(kk % 4) + 4*tt, 4)}, v{LB + kk % 2} offset:{(kk//2)*4096 + tt*2048}' for tt in range(2)]
    for kk in range(3): e(*rd(kk))
    e(group_poll(F2), f's_xor_b32 {sLB}, {sLB}, 0x10000', f'v_cmp_eq_u32 {sEARLY}, 0, v{F1}', f's_mov_b32 {sPRE}, 0')
    mid = g.opt.get('f_mid', 7)
    for kk in range(16):
        if kk + 3 < 16: e(*rd(kk + 3))
        if kk == mid:
            g.cst(1)
            e('s_waitcnt vmcnt(0)', f's_cmp_eq_u32 {sPEND}, 0', f's_cbranch_scc1 {L("NP")}')
            group_wait(g, 'F', F2, first=False)
            e(*x1load)
            part_loads(g, R, last=RL5)
            e(f'{L("NP")}:', f's_cmp_lg_u64 {sEARLY}, 0', f's_cbranch_scc1 {L("NF")}')
            fetchnext()
            e(f's_branch {L("NG")}', f'{L("NF")}:', *nextflag(1), f'{L("NG")}:')
            g.cst(2)
        e(f's_waitcnt lgkmcnt({2 * min(3, 15 - kk)})')
        for tt in range(2):
            for m, A in ((0, G), (1, U)):
                e(mf32(A + 4*tt, ar(64*m + 4*kk, 4), HF + 8*(kk % 4) + 4*tt, A + 4*tt if kk else None))
    g.cst(3)
    for k in range(4): e(*rnd2(G + 2*k, G + 2*k + 1, HF + k))
    e(*silu(list(range(G, G + 8)), list(range(HF, HF + 8))))
    for k in range(4): e(*rnd2(G + 2*k, G + 2*k + 1, HF + k), *rnd2(U + 2*k, U + 2*k + 1, HF + 4 + k))
    e(*[pk('mul', G + 2*k, G + 2*k, U + 2*k) for k in range(4)], *[cvt(U + k, G + 2*k, G + 2*k + 1) for k in range(4)],
      f'ds_write_b64 v{AW}, {vr(U,2)}', f'ds_write_b64 v{AW}, {vr(U+2,2)} offset:2048', f'v_xor_b32 v{LB}, 0x10000, v{LB}', f'v_xor_b32 v{LB+1}, 0x10000, v{LB+1}', 's_waitcnt lgkmcnt(0)', 's_barrier',
      *[f'ds_read_b128 {vr(OF + 4*n, 4)}, v{L16} offset:{ACT + n*1024}' for n in range(4)])
    g.cst(4)
    e(f's_cmp_eq_u32 {sPEND}, 0', f's_cbranch_scc1 {L("ND")}', f's_cmp_eq_u32 {sPRE}, 0', f's_cbranch_scc1 {L("W0")}', 's_waitcnt vmcnt(8)', f's_branch {L("W1")}',
      f'{L("W0")}:', 's_waitcnt vmcnt(1)', f'{L("W1")}:', '; arrived')
    part_sum(g, R, SEL, RD_, after=None)
    e(*finish, f'{L("ND")}:', 's_waitcnt lgkmcnt(0)')
    g.cst(5)
    proj_out(g, lambda d, k: W2 + (d*2 + k)*4, 2, OF, (92, 28), 60, sc)
    g.cst(6)
    g.rst(9, T0, sN)
    e(f's_cmp_lg_u32 {sPRE}, 0', f's_cbranch_scc1 {L("L1")}', f's_waitcnt vmcnt({9 if g.opt.get("rst") else 8})', '; arrived', f'v_cmp_eq_u32 vcc, 0, v{F1}', f's_cbranch_vccnz {L("L2")}')
    fetchnext()
    e(*nextflag(2))
    signal_group(g, sc, 9)
    e(f's_branch {L("L3")}', f'{L("L1")}:', *nextflag(2))
    signal_group(g, sc, 1)
    e(f'{L("L3")}:')
    g.cst(7)
    e(*row, f's_mov_b32 {sPEND}, 1', 's_waitcnt vmcnt(1)')
    g.cst(8)
    e(f's_branch {L("TOP")}')
    e(f'{L("L2")}:', f's_mov_b32 {sPEND}, 0', f'{L("SIG")}:')
    signal_group(g, sc)
    g.cst(7)
    e(*row, f'{L("RED")}:')
    group_wait(g, 'F', T0)
    g.cst(9)
    e(*x1load)
    part_loads(g, R, last=RL5)
    part_sum(g, R, SEL, RD_)
    e(*finish)
    g.rst(6, T0, sN)
    g.cst(10)
    e(f's_cmp_lt_u32 {sS}, 64', f's_cbranch_scc1 {L("LOOP")}')
    g.cst_flush(sN, T0, T1, L16)
    e('s_waitcnt vmcnt(0)')
    g.rst(5, T0); g.dbgt(14, T0, 7); e('s_waitcnt vmcnt(0)')
    e('s_endpgm')


def ffn_role(g):
    e = g.e
    lane, lam, grp = T4, T3, T2
    e(f'v_mov_b32 v{lane}, v0')
    lane_consts(g, lane, lam, grp)
    g.srd(RD, P_OUT, 2 * MB)
    e(f'v_mov_b32 v28, {OOB}', f'v_cmp_gt_u32 vcc, 2, v{grp}', f'v_cndmask_b32 v{RL5}, v28, v{RLD}, vcc',
      f's_lshr_b32 s33, {sW}, 1', 's_lshl_b32 s33, s33, 10', f's_and_b32 s34, {sW}, 1', 's_lshl_b32 s34, s34, 3', 's_add_u32 s33, s33, s34',
      f's_add_u32 s33, s33, {ACT}', f'v_add_u32 v{AW}, s33, v{L16}',
      f'v_lshlrev_b32 v28, 2, v{FLA}', f's_lshl_b32 s33, {sW}, 2', f'v_add_u32 v{H2F}, s33, v28')
    row_base(g, LB, lam, grp)
    e(f'v_xor_b32 v{LB+1}, 64, v{LB}')
    front(g)
    weights(g)
    g.wait_ready(T4, T1, T2)
    e(f's_cmp_lg_u32 {sMODE}, 0', 's_cbranch_scc1 FS_ENTRY')
    ffn_loop(g, 'F')
    ffn_loop(g, 'S')
```

```python
from common import *

MBUF, KXBUF, QKBUF, OBUF, WQB = 0, 8192, 16384, 20480, 32768
T0, VG, WQ0, MB1, L16, QKW, QKR, OW, VA, VP, IDX, SEED, FLG, MSL, T1 = 0, 1, 2, 6, 9, 10, 11, 12, 13, 14, 15, 16, 17, 18, 19
SENT = SM = 20
K0, Q0, K1, Q1 = 24, 28, 32, 36
V0, V1 = 24, 28
X0, X1 = 32, 36
VX_ = 40
M = 48
RING = 80
WO = 128
sS, sMR, sMP, sHI, sIR, sIA, sPA, sPB, sFL, sKX, sVX, sC = [f's{i}' for i in range(41, 53)]
sONE = 's[54:55]'
sMASK = [f's[{64+2*j}:{65+2*j}]' for j in range(4)]
STS = 72


_smf = smf


def smf(d, a, b):
    return _smf(d, a, b, IDX)


def team_init(g):
    e = g.e
    g.srd(RA, P_MEM0, 8192)
    e('v_lshrrev_b32 v10, 4, v0', 'v_and_b32 v11, 1, v10', 'v_lshlrev_b32 v11, 10, v11', 'v_lshrrev_b32 v12, 1, v10', 'v_lshlrev_b32 v12, 2, v12',
      'v_and_b32 v13, 15, v0', 'v_lshlrev_b32 v14, 3, v13', 'v_add3_u32 v11, v11, v12, v14',
      f's_lshl_b32 s33, {sW}, 11', f's_lshl_b32 s34, {sT}, 5', 's_add_u32 s33, s33, s34',
      'v_lshlrev_b32 v12, 4, v10', 'v_lshlrev_b32 v14, 2, v13', f's_lshl_b32 s35, {sW}, 6', 'v_add3_u32 v12, v12, v14, s35',
      f'v_mov_b32 v14, {OOB}', 'v_cmp_gt_u32 vcc, 4, v13', 'v_cndmask_b32 v11, v14, v11, vcc', 'v_cndmask_b32 v113, v14, v12, vcc',
      f'buffer_load_dword v112, v11, {RA}, s33 offen',
      'v_mov_b32 v20, -1', 'v_mov_b32 v21, -1', 'v_mov_b32 v22, -1', 'v_mov_b32 v23, -1',
      'v_lshlrev_b32 v10, 4, v0', f's_lshl_b32 s33, {sW}, 11', f's_lshl_b32 s34, {sT}, 13', 's_add_u32 s33, s33, s34', f's_add_u32 s33, s33, {INBOX}',
      f'buffer_store_dwordx4 v[20:23], v10, {WS}, s33 offen sc1', f'buffer_store_dwordx4 v[20:23], v10, {WS}, s33 offen offset:1024 sc1',
      f's_lshl_b32 s34, {sT}, 8', f's_add_u32 s34, s34, {MRING}', 's_waitcnt vmcnt(2)', 'v_min_u32 v112, -2, v112',
      f'buffer_store_dword v112, v113, {WS}, s34 offen sc1')


def team_setup(g):
    e = g.e
    e(f'v_mov_b32 v{MSL}, v112', f'v_mov_b32 v{VP}, v113', 'v_mov_b32 v20, v0')
    e(f'v_lshlrev_b32 v{L16}, 4, v20', f's_lshl_b32 s33, {sW}, 11', f'v_add_u32 v{VG}, s33, v{L16}')
    for p in range(4):
        e(f's_add_u32 s33, {sW}, {p}', 's_and_b32 s33, s33, 3')
        if p: e('s_lshl_b32 s34, s33, 11', f'v_add_u32 v{MB1+p-1}, s34, v{L16}')
        e('s_lshl_b32 s33, s33, 15', f's_lshl_b32 s34, {sW}, 12', 's_add_u32 s33, s33, s34', f's_add_u32 s33, s33, {WQB}', f'v_add_u32 v{WQ0+p}, s33, v{L16}')
    e('v_and_b32 v21, 15, v20', 'v_lshrrev_b32 v22, 4, v20')
    e('v_lshrrev_b32 v23, 2, v21', 'v_xor_b32 v24, v22, v23', 'v_lshlrev_b32 v24, 3, v24', 'v_lshlrev_b32 v25, 5, v21',
      f's_lshl_b32 s33, {sW}, 10', f's_add_u32 s33, s33, {QKBUF}', f'v_add3_u32 v{QKW}, v24, v25, s33')
    e('v_lshlrev_b32 v24, 2, v22', 'v_add_u32 v24, v24, v23', 'v_lshlrev_b32 v24, 5, v24', 'v_and_b32 v25, 3, v21', 'v_xor_b32 v26, v25, v22',
      'v_lshlrev_b32 v26, 3, v26', f's_mov_b32 s33, {QKBUF}', f'v_add3_u32 v{QKR}, v24, v26, s33')
    e('v_lshlrev_b32 v24, 6, v23', 'v_and_b32 v26, 1, v21', 'v_lshlrev_b32 v26, 4, v26', 'v_lshlrev_b32 v27, 8, v22', 'v_add3_u32 v24, v24, v26, v27',
      f's_lshr_b32 s33, {sW}, 1', 's_lshl_b32 s33, s33, 10', f's_and_b32 s34, {sW}, 1', 's_lshl_b32 s34, s34, 5', 's_add_u32 s33, s33, s34',
      f's_add_u32 s33, s33, {OBUF}', f'v_add_u32 v24, s33, v24', 'v_xor_b32 v26, 32, v24', 'v_add_u32 v26, 0x800, v26',
      'v_cmp_lt_u32 vcc, 1, v25', f'v_cndmask_b32 v{OW}, v26, v24, vcc')
    e('v_lshlrev_b32 v24, 13, v23', 'v_lshlrev_b32 v26, 11, v22', 'v_lshlrev_b32 v27, 4, v25', 'v_add3_u32 v24, v24, v26, v27',
      f's_lshl_b32 s33, {sW}, 16', f'v_add_u32 v{VA}, s33, v24')
    e('v_mov_b32 v24, 0x44444444', 'v_mov_b32 v26, 0xeeeeeeee', f'v_cndmask_b32 v{IDX}, v24, v26, vcc',
      'v_mov_b32 v24, 0x3f80', 'v_mov_b32 v26, 0x3f800000', 'v_cmp_eq_u32 vcc, 0, v25', 'v_cndmask_b32 v24, v26, v24, vcc',
      'v_cmp_gt_u32 vcc, 2, v25', f'v_cndmask_b32 v{SEED}, 0, v24, vcc')
    for j in range(4):
        m = 0x000f000f << (4 * j)
        e(f's_mov_b32 s{64+2*j}, {m:#x}', f's_mov_b32 s{65+2*j}, {m:#x}')
    e('s_mov_b32 s54, 0x3f803f80', 's_mov_b32 s55, 0x3f803f80', f's_mov_b32 {sC}, 0x3e0293ee')
    e(f's_mov_b32 {sS}, 0', f's_mov_b32 {sMR}, {MRING}', f's_lshl_b32 s33, {sT}, 8', f's_add_u32 {sMP}, s33, {MRING + 8192}', f's_add_u32 {sHI}, s33, {MHIST}',
      f's_lshl_b32 s33, {sT}, 13', f's_add_u32 {sIR}, s33, {INBOX}', f's_add_u32 {sIA}, s33, {INBOX + 262144}',
      f's_add_u32 {sKX}, s33, {KX}', f's_add_u32 {sVX}, s33, {VX}',
      f's_lshl_b32 s33, {sT}, 6', f's_add_u32 {sPA}, s33, {INBOX}', f's_add_u32 {sPB}, s33, {INBOX + 32768}',
      f's_lshl_b32 s33, {sT}, 10', f's_lshl_b32 s34, {sW}, 2', 's_add_u32 s33, s33, s34', f's_add_u32 {sFL}, s33, {KVFLAG}')


def wq_read(f, jj):
    order = [(0, 0), (0, 1), (1, 0), (1, 1)] + [(i, 0) for i in range(2, 8)] + [(i, 1) for i in range(2, 8)]
    i, t = order[f]
    return f'ds_read_b128 {vr(RING + 8*(f%6) + 4*jj, 4)}, v{WQ0 + i//2} offset:{(i%2)*16384 + t*2048 + jj*1024}'


def team_loop(g, mode):
    e = g.e
    opt = g.opt
    sc = ' sc1' if mode == 'S' else ''
    st = opt.get('stamps')
    def stamp(k):
        return [f's_memtime s[{STS+2*k}:{STS+2*k+1}]'] if st else []
    L = lambda n: f'T{mode}_{n}'
    KXS = [RING + 32, RING + 40, RING + 0, RING + 8]
    QKF = RING + 16
    P = RING + 16; PMA = RING + 20; PMB = RING + 24; VM = X1 + 2
    ONES = RING + 32; SUM = RING + 36; O0 = RING + 40; O1 = RING + 44
    OF = RING + 16
    STG = RING
    RP = M + 16
    SEL = 32; RD_ = 36

    def kv_loads():
        return [f'buffer_load_dwordx4 {vr(STG,4)}, v{VG}, {WS}, {sKX} offen sc1', f'buffer_load_dwordx4 {vr(STG+4,4)}, v{VG}, {WS}, {sKX} offen offset:1024 sc1',
                f'buffer_load_dwordx4 {vr(STG+8,4)}, v{VG}, {WS}, {sVX} offen sc1', f'buffer_load_dwordx4 {vr(STG+12,4)}, v{VG}, {WS}, {sVX} offen offset:1024 sc1']

    def kv_place():
        return [f'ds_write_b128 v{VG}, {vr(STG,4)} offset:{KXBUF}', f'ds_write_b128 v{VG}, {vr(STG+4,4)} offset:{KXBUF+1024}'] + \
               [f'v_mov_b64 {vr(VX_+i,2)}, {vr(STG+8+i,2)}' for i in range(0, 8, 2)]

    def preload():
        return [wq_read(f, jj) for f in range(6) for jj in range(2)]

    def mpoll():
        return [f'buffer_load_dwordx4 {vr(M,4)}, v{VG}, {WS}, {sMR} offen sc1', f'buffer_load_dwordx4 {vr(M+4,4)}, v{VG}, {WS}, {sMR} offen offset:1024 sc1']

    def rpoll():
        return [f'buffer_load_dwordx4 {vr(RP,4)}, v{VG}, {WS}, {sIR} offen sc1', f'buffer_load_dwordx4 {vr(RP+4,4)}, v{VG}, {WS}, {sIR} offen offset:1024 sc1']

    dup = lambda l: [x + ' ; dup' for x in l]
    nop = lambda n: [f's_nop {min(n - k, 16) - 1}' for k in range(0, n, 16)]

    def check(r, again):
        e(f'v_max3_u32 v{T0}, v{r}, v{r+1}, v{r+2}', f'v_max3_u32 v{T1}, v{r+3}, v{r+4}, v{r+5}', f'v_max_u32 v{T0}, v{T0}, v{r+6}',
          f'v_max3_u32 v{T0}, v{T0}, v{T1}, v{r+7}', f'v_cmp_eq_u32 vcc, -1, v{T0}', f's_cbranch_vccnz {again}')

    e(f'{L("ENTRY")}:', f'{L("F0")}:', f'buffer_load_dword v{FLG}, off, {WS}, {sFL} sc1', 's_waitcnt vmcnt(0)',
      f'v_cmp_ne_u32 vcc, 0, v{FLG}', f's_cbranch_vccnz {L("F0OK")}')
    g.retry(L('F0'), 2, 1)
    e(f'{L("F0OK")}:')
    g.rst(4, T0); g.dbgt(9, T0)
    e(*kv_loads(), f's_add_u32 {sFL}, {sFL}, 16', f's_add_u32 {sKX}, {sKX}, 0x40000', f's_add_u32 {sVX}, {sVX}, 0x40000',
      's_waitcnt vmcnt(0)', *kv_place(), *preload())
    e(*mpoll(), *dup(mpoll()), *zero(K0, 16), f'v_mov_b64 {vr(SENT,2)}, -1', f'v_mov_b64 {vr(SENT+2,2)}, -1', 's_waitcnt vmcnt(2)')

    e(f'{L("STEP")}:', f's_waitcnt vmcnt({3 if st else 2})')
    check(M, L('MRETRY'))
    e(f'{L("MOK")}:')
    if opt.get('rst_team'): g.rst(8, T0, sS, 2)
    e(*stamp(0))
    if st: e(f's_mov_b32 s90, {sBUD}')
    e(f'ds_write_b128 v{VG}, {vr(M,4)} offset:{MBUF}', f'ds_write_b128 v{VG}, {vr(M+4,4)} offset:{MBUF+1024}')
    e('s_waitcnt lgkmcnt(2)')
    wk = lambda i, t: ar((i*2 + t)*8, 8)
    wv = lambda i, t: ar(128 + (i*2 + t)*8, 8)
    wq = lambda f: vr(RING + 8*(f % 6), 8)
    mf = [smf(Q0, M, wq(0)), smf(Q1, M, wq(1)), smf(Q0, M+4, wq(2)), smf(Q1, M+4, wq(3)),
          smf(K0, M, wk(0, 0)), smf(K1, M, wk(0, 1)), smf(K0, M+4, wk(1, 0)), smf(K1, M+4, wk(1, 1))]
    for i in range(2, 8): mf += [smf(Q0, M+4*i, wq(2+i)), smf(K0, M+4*i, wk(i, 0))]
    for i in range(2, 8): mf += [smf(Q1, M+4*i, wq(8+i)), smf(K1, M+4*i, wk(i, 1))]
    mread = lambda i: f'ds_read_b128 {vr(M+4*i,4)}, v{MB1 + i//2 - 1} offset:{MBUF + (i%2)*1024}'
    kxread = lambda j, tt: f'ds_read_b128 {vr(KXS[j]+4*tt,4)}, v{L16} offset:{KXBUF + j*2048 + tt*1024}'
    W = lambda f: [(wq_read(f, 0), 2*f), (wq_read(f, 1), 2*f)]
    Mr = lambda i: [(mread(i), 2*i + 4)]
    first = opt.get('t_first', 3)
    pre = (W(6) + W(7) + W(8))[:first + 1]
    rest = (W(6) + W(7) + W(8))[first + 1:]
    reads = Mr(2) + Mr(3) + Mr(4) + rest + Mr(5) + W(9) + Mr(6) + Mr(7)
    for f in range(10, 16): reads += W(f)
    gaps = {i: [] for i in range(40)}
    q = []
    for n, (txt, by) in enumerate(pre): q.append([n, txt, by])
    q.append([first, f's_waitcnt lgkmcnt({len(pre)})\ns_barrier' + ''.join('\n' + x for x in stamp(1)), -1])
    gi = first
    for txt, by in reads:
        q.append([gi, txt, by]); gi += 1
    pack0 = [f'v_add_f32 v{K0}, v{K0}, v{K0+2}', f'v_add_f32 v{K0+1}, v{K0+1}, v{K0+3}', f'v_add_f32 v{Q0}, v{Q0}, v{Q0+2}', f'v_add_f32 v{Q0+1}, v{Q0+1}, v{Q0+3}',
             f'v_cvt_pk_bf16_f32 v{T0}, v{K0}, v{K0+1}', f'v_cvt_pk_bf16_f32 v{K0+3}, v{Q0}, v{Q0+1}']
    pack0[4] = f'v_cvt_pk_bf16_f32 v{K0+2}, v{K0}, v{K0+1}'
    valu = {20: pack0[2], 21: pack0[3], 22: pack0[0], 23: pack0[1], 24: pack0[5], 25: pack0[4]}
    wr0 = f'ds_write_b64 v{QKW}, {vr(K0+2,2)}'
    q.append([26, wr0, 99])
    kx = [(kxread(j, tt)) for j in range(4) for tt in range(2)]
    kxgap = []
    for n, txt in enumerate(kx):
        lo = [20, 20, 22, 22, 24, 24, 26, 26][n]
        gg = max(gi, lo); q.append([gg, txt, 99]); gi = gg + 1
    q.sort(key=lambda x: x[0])
    for z in range(4): valu[27 + z] = zero(V0, 8)[z]
    rearm = [f'buffer_store_dword v{SENT}, v{VP}, {WS}, {sMP} offen{sc}', f'buffer_store_dwordx4 {vr(SENT,4)}, v{VG}, {WS}, {sIA} offen{sc}',
             f'buffer_store_dwordx4 {vr(SENT,4)}, v{VG}, {WS}, {sIA} offen offset:1024{sc}']
    misc = {
        5: [f'buffer_load_dword v{FLG}, off, {WS}, {sFL} sc1'],
        7: [f'buffer_store_dword v{MSL}, v{VP}, {WS}, {sHI} offen sc1'],
        9: [rearm[0]],
        10: [f's_xor_b32 {sMR}, {sMR}, 0x2000'], 11: [f's_add_u32 {sHI}, {sHI}, 0x2000'],
        12: [f's_add_u32 {sS}, {sS}, 1'],
    }
    misc.setdefault(opt.get('t_ra1', 14), []).append(rearm[1])
    misc.setdefault(opt.get('t_ra2', 22), []).append(rearm[2])
    vs = []
    for i in range(8): vs += [smf(V0, M+4*i, wv(i, 0)), smf(V1, M+4*i, wv(i, 1))]
    nA = opt.get('t_vA', 2); nB = opt.get('t_vB', 3); nC = opt.get('t_vC', 5); nD = opt.get('t_vD', 2)
    mfa = mf + vs[:nA]
    issued = []
    for i, m in enumerate(mfa):
        needed = [k for k, x in enumerate(issued) if x[2] == i]
        if needed: e(f's_waitcnt lgkmcnt({len(issued) - 1 - max(needed)})')
        e(m)
        for x in gaps.get(i, []): e(x)
        for x in q:
            if x[0] == i or (i == len(mfa) - 1 and x[0] > i):
                e(x[1])
                if x[2] >= 0: issued.append(x)
        for x in misc.get(i, []): e(x)
        if i in valu: e(valu[i])
    vs = vs[nA:]
    e(*stamp(2))
    g.dump('qk', [f'v{i}' for i in range(1, 128)], L16, T0)
    e(f'v_add_f32 v{K1}, v{K1}, v{K1+2}', f'v_add_f32 v{K1+1}, v{K1+1}, v{K1+3}', f'v_add_f32 v{Q1}, v{Q1}, v{Q1+2}', f'v_add_f32 v{Q1+1}, v{Q1+1}, v{Q1+3}',
      f'v_cvt_pk_bf16_f32 v{K1+2}, v{K1}, v{K1+1}', f'v_cvt_pk_bf16_f32 v{K1+3}, v{Q1}, v{Q1+1}', f'ds_write_b64 v{QKW}, {vr(K1+2,2)} offset:512')
    e(*vs[:nB]); vs = vs[nB:]
    e('s_waitcnt lgkmcnt(0)', 's_barrier')
    tr = [f'ds_read_b64_tr_b16 {vr(QKF + 4*j + 2*u, 2)}, v{QKR} offset:{j*1024 + u*512}' for j in range(4) for u in range(2)]
    e(*tr[:2])
    k = 2
    for m in vs[:nC]:
        e(m, *tr[k:k+2]); k += 2
    e(*tr[k:])
    vs = vs[nC:]
    for j in range(4):
        e(f's_waitcnt lgkmcnt({6 - 2*j})')
        e(mf32(X0, KXS[j], QKF + 4*j, X0 if j else None), mf32(X1, KXS[j] + 4, QKF + 4*j, X1 if j else None))
        if j == 1: e(f'v_mov_b64 {vr(ONES,2)}, {sONE}', f'v_mov_b64 {vr(ONES+2,2)}, {sONE}')
        if j == 3: e('s_waitcnt vmcnt(4)', f'v_cmp_eq_u32 vcc, 0, v{FLG}')
        e(mf32(SM, QKF + 4*j, QKF + 4*j, SM if j else None))
    e(f's_cbranch_vccnz {L("FRETRY")}', f'{L("FOK")}:')
    ld = kv_loads()
    if opt.get('t_nokv'): ld = [x.replace(sKX, sIR).replace(sVX, sIR).replace(f'v{VG},', f'v{VP},').replace('dwordx4 v[', 'dword v').replace(':83]', '').replace(':87]', '').replace(':91]', '').replace(':95]', '') for x in ld]
    zp = zero(PMA, 8)
    for m in vs[:nD]:
        e(m, *ld[:2], zp.pop(0)); ld = ld[2:]
    e(*ld)
    vs = vs[nD:]
    e(*stamp(3))
    g.dump('s', [f'v{i}' for i in range(1, 128)], L16, T0)
    e(f'v_max3_f32 v{T0}, v{X0}, v{X0+1}, v{X0+2}', f'v_max3_f32 v{T1}, v{X0+3}, v{X1}, v{X1+1}', f'v_max3_f32 v{T0}, v{T0}, v{X1+2}, v{X1+3}',
      f'v_max3_f32 v{T1}, v{T1}, v{SM}, v{SM+1}', f'v_max_f32 v{T0}, v{T0}, v{T1}', f'v_mov_b32 v{T1}, v{T0}')
    if vs: e(vs.pop(0))
    e(f'v_permlane32_swap_b32 v{T0}, v{T1}', f'v_max_f32 v{T0}, v{T0}, v{T1}', f'v_mov_b32 v{T1}, v{T0}')
    if vs: e(vs.pop(0))
    e(f'v_permlane16_swap_b32 v{T0}, v{T1}', f'v_max_f32 v{T0}, v{T0}, v{T1}', f'v_mul_f32 v{T0}, {sC}, v{T0}')
    sr = [X0, X0+1, X0+2, X0+3, X1, X1+1, X1+2, X1+3, SM, SM+1]
    for r in sr: e(f'v_fma_f32 v{r}, v{r}, {sC}, -v{T0}')
    for m in vs: e(m, *zp[:1]); zp = zp[1:]
    vs = []
    e(*zp)
    for r in sr: e(f'v_exp_f32 v{r}, v{r}')
    for n in range(4): e(f'v_cvt_pk_bf16_f32 v{P+n}, v{sr[2*n]}, v{sr[2*n+1]}')
    e(f'v_cvt_pk_bf16_f32 v{PMA}, v{SM}, v{SM+1}', f'v_cvt_pk_bf16_f32 v{PMB+1}, v{SM}, v{SM+1}')
    vp = [f'v_add_f32 v{V0}, v{V0}, v{V0+2}', f'v_add_f32 v{V0+1}, v{V0+1}, v{V0+3}', f'v_add_f32 v{V1}, v{V1}, v{V1+2}', f'v_add_f32 v{V1+1}, v{V1+1}, v{V1+3}',
          f'v_cvt_pk_bf16_f32 v{VM}, v{V0}, v{V0+1}', f'v_cvt_pk_bf16_f32 v{VM+1}, v{V1}, v{V1+1}']
    e(mf32(SUM, ONES, P, None), *vp[:2], mf32(SUM, ONES, PMA, SUM), *vp[2:4], mf32(O0, VX_, P, None), *vp[4:6], mf32(O1, VX_+4, P, None))
    zw = zero(M, 32)
    e(*zw[:2], mf32(O0, VM, PMA, O0), f'v_rcp_f32 v{T0}, v{SUM}', mf32(O1, VM, PMB, O1), *zw[2:6])
    for r in range(4): e(f'v_mul_f32 v{O0+r}, v{O0+r}, v{T0}')
    e(f'v_cvt_pk_bf16_f32 v{O0}, v{O0}, v{O0+1}', f'v_cvt_pk_bf16_f32 v{O0+1}, v{O0+2}, v{O0+3}')
    for r in range(4): e(f'v_mul_f32 v{O1+r}, v{O1+r}, v{T0}')
    e(f'v_cvt_pk_bf16_f32 v{O0+2}, v{O1}, v{O1+1}', f'v_cvt_pk_bf16_f32 v{O0+3}, v{O1+2}, v{O1+3}', f'ds_write_b128 v{OW}, {vr(O0,4)}')
    e(*stamp(4))
    g.dump('o', [f'v{i}' for i in range(1, 128)], L16, T0)
    e(*zw[6:12], 's_waitcnt vmcnt(4) lgkmcnt(0)', 's_barrier',
      f'ds_read_b128 {vr(OF,4)}, v{L16} offset:{OBUF}', f'ds_read_b128 {vr(OF+4,4)}, v{L16} offset:{OBUF+1024}', *zw[12:],
      f's_xor_b32 {sIA}, {sIA}, 0x40000',
      f's_add_u32 {sFL}, {sFL}, 16', f's_add_u32 {sKX}, {sKX}, 0x40000', f's_add_u32 {sVX}, {sVX}, 0x40000')
    wo = lambda d, c: vr(WO + (d*2 + c)*8, 8)
    order = []
    for pr in range(4): order += [(2*pr, 0), (2*pr+1, 0), (2*pr, 1), (2*pr+1, 1)]
    mf = [smf(M + 4*d, OF + 4*c, wo(d, c)) for d, c in order]
    PH = [SENT, K0]
    def packp(pr):
        a, b = M + 8*pr, M + 8*pr + 4
        ph = PH[pr // 2] + 2*(pr % 2)
        return [f'v_add_f32 v{a}, v{a}, v{a+2}', f'v_add_f32 v{b}, v{b}, v{b+2}', f'v_add_f32 v{a+1}, v{a+1}, v{a+3}', f'v_add_f32 v{b+1}, v{b+1}, v{b+3}',
                f'v_cvt_pk_bf16_f32 v{ph}, v{a}, v{b}', f'v_cvt_pk_bf16_f32 v{ph+1}, v{a+1}, v{b+1}']
    pend = []
    gaps = {}
    for i in range(16):
        if i >= 5 and (i - 5) % 4 == 0: pend += packp((i - 5) // 4)
        n = 2 if (i % 2 == 1) else 1
        gaps[i] = pend[:n]; pend = pend[n:]
    e('s_waitcnt lgkmcnt(1)')
    for i, m in enumerate(mf):
        if i == 2: e('s_waitcnt lgkmcnt(0)')
        e(m, *gaps[i])
        if gaps[i] and gaps[i][-1].startswith(f'v_cvt_pk_bf16_f32 v{PH[0]+3},'):
            e(f'buffer_store_dwordx4 {vr(PH[0],4)}, v{VA}, {WS}, {sPA} offen{sc}')
    e(*pend, *packp(3), f'buffer_store_dwordx4 {vr(PH[1],4)}, v{VA}, {WS}, {sPB} offen{sc}')
    e(*stamp(5))
    g.dump('p', [f'v{i}' for i in range(1, 128)], L16, T0)
    pl = preload()
    e(*[f'v_cndmask_b32 v{SEL+j}, 0, v{SEED}, {sMASK[j]}' for j in range(4)], f's_xor_b32 {sPA}, {sPA}, 0x40000', f's_xor_b32 {sPB}, {sPB}, 0x40000',
      's_waitcnt vmcnt(2)', *kv_place(), *zero(K0, 8), f'v_mov_b64 {vr(SENT,2)}, -1', f'v_mov_b64 {vr(SENT+2,2)}, -1')
    npr = opt.get('t_npr', 6)
    e(*pl[:npr], *nop(opt.get('t_rd1', 0)), *rpoll(), *nop(opt.get('t_rd2', 28)), *dup(rpoll()), 's_waitcnt vmcnt(2)')
    check(RP, L('RRETRY'))
    e(f'{L("ROK")}:')
    e(*stamp(6))
    if st: e(f's_mov_b32 s91, {sBUD}')
    e(mf32(RD_, SEL, RP, None), mf32(RD_, SEL, RP+4, RD_), f's_xor_b32 {sIR}, {sIR}, 0x40000', f's_cmp_eq_u32 {sS}, {opt.get("nsteps", 63)}')
    e(f'v_add_f32_dpp v{RD_}, v{RD_}, v{RD_} row_ror:4 row_mask:0xf bank_mask:0xf', f'v_add_f32_dpp v{RD_+1}, v{RD_+1}, v{RD_+1} row_ror:4 row_mask:0xf bank_mask:0xf',
      f'v_add_f32_dpp v{RD_}, v{RD_}, v{RD_} row_ror:8 row_mask:0xf bank_mask:0xf', f'v_add_f32_dpp v{RD_+1}, v{RD_+1}, v{RD_+1} row_ror:8 row_mask:0xf bank_mask:0xf',
      f'v_cvt_pk_bf16_f32 v{MSL}, v{RD_}, v{RD_+1}', f'v_min_u32 v{MSL}, -2, v{MSL}', f's_cbranch_scc1 {L("LAST")}',
      f'buffer_store_dword v{MSL}, v{VP}, {WS}, {sMP} offen{sc}', f's_xor_b32 {sMP}, {sMP}, 0x2000', *zero(K1, 8))
    e(*pl[npr:], *nop(opt.get('t_md1', 0)), *mpoll(), *nop(opt.get('t_md2', 28)), *dup(mpoll()))
    if st:
        e(*stamp(7), 's_waitcnt lgkmcnt(0)')
        for k in range(8): e(f'v_writelane_b32 v{T0}, s{STS+2*k}, {k}')
        e(f'v_writelane_b32 v{T0}, s90, 8', f'v_writelane_b32 v{T0}, s91, 9')
        e(f's_lshl_b32 s33, {sS}, 6', 's_add_u32 s33, s33, s61', f'v_lshrrev_b32 v{T1}, 2, v{L16}', 's_mov_b64 exec, 0xffff',
          f'buffer_store_dword v{T0}, v{T1}, {WS}, s33 offen', 's_mov_b64 exec, -1')
    e(f's_branch {L("STEP")}')
    e(f'{L("LAST")}:', f'buffer_store_dword v{MSL}, v{VP}, {WS}, {sHI} offen sc1', 's_waitcnt vmcnt(0)')
    g.rst(5, T0); g.clk(T0); g.dbgt(10, T0); g.dbgt(11, T0, clk=True); e('s_waitcnt vmcnt(0)')
    e('s_endpgm')
    for nm, poll, r in (('M', mpoll, M), ('R', rpoll, RP)):
        e(f'{L(nm + "RETRY")}:')
        if opt.get('t_mask', 1): e('s_mov_b64 exec, vcc')
        e(*g.site(3 if nm == 'M' else 4), *dup(poll()), f's_sub_u32 {sBUD}, {sBUD}, 1', 's_cbranch_scc1 GIVEUP', 's_waitcnt vmcnt(2)')
        check(r, L(nm + 'RETRY'))
        e('s_mov_b64 exec, -1', f's_branch {L(nm + "OK")}')
    e(f'{L("FRETRY")}:', f'buffer_load_dword v{FLG}, off, {WS}, {sFL} sc1', 's_waitcnt vmcnt(0)', f'v_cmp_ne_u32 vcc, 0, v{FLG}', f's_cbranch_vccnz {L("FOK")}')
    g.retry(L('FRETRY'), 1, 2)


def team_role(g):
    e = g.e
    team_setup(g)
    g.dump('w', [f'a{i}' for i in range(256)] + [f'v{i}' for i in range(128, 256)], L16, T0)
    g.wait_ready(20, 21, 22)
    e(f's_cmp_lg_u32 {sMODE}, 0', 's_cbranch_scc1 TS_ENTRY')
    team_loop(g, 'F')
    team_loop(g, 'S')
```

```python
import sys, os, json
sys.path.insert(0, os.path.dirname(os.path.abspath(__file__)))
from common import *
import asmlib
import team

REF = 'cdna_kernels/' + NAME[:-len('_kernel')] + '.s.ref'


def header():
    out = []
    for l in open(REF).read().split('\n'):
        if l.startswith('; @launch'): break
        out.append(l)
    out.append('; @launch grid=(256,1,1) block=(256,1,1) lds=163840')
    out += ['.amdgcn_target "amdgcn-amd-amdhsa--gfx950"', '.text', f'.globl {NAME}', '.p2align 8', f'.type {NAME},@function', f'{NAME}:']
    return out


def footer():
    return ['.section .rodata,"a"', '.p2align 6', f'.amdhsa_kernel {NAME}', '  .amdhsa_next_free_vgpr 512', '  .amdhsa_next_free_sgpr 102',
            '  .amdhsa_accum_offset 256', '  .amdhsa_group_segment_fixed_size 0', '  .amdhsa_kernarg_size 128', '  .amdhsa_user_sgpr_count 2',
            '  .amdhsa_user_sgpr_kernarg_segment_ptr 1', '  .amdhsa_system_sgpr_workgroup_id_x 1', '.end_amdhsa_kernel']


def generate(opt=None, verbose=False):
    opt = opt or {}
    roles = opt.get('roles', 'taf')
    g = Gen(opt)
    e = g.e
    g.prologue()
    e(f'v_mov_b32 v113, {OOB}')
    e(f's_cmp_gt_u32 {sX}, {NATT}', 's_cbranch_scc1 FFN_ROLE', f's_cmp_lg_u32 {sX}, 0', 's_cbranch_scc1 ATT_LOAD')
    team.team_init(g)
    e('ATT_LOAD:')
    if 'a' not in roles: e(f's_cmp_lg_u32 {sX}, 0', 's_cbranch_scc1 IDLE_ROLE')
    if 't' not in roles: e(f's_cmp_eq_u32 {sX}, 0', 's_cbranch_scc1 IDLE_ROLE')
    g.load_attn_weights('A')
    e(f's_cmp_lg_u32 {sX}, 0', 's_cbranch_scc1 ATT_ROLE')
    team.team_role(g)
    e('ATT_ROLE:')
    if 'a' in roles:
        import att
        att.att_role(g)
    else: e('s_endpgm')
    e('FFN_ROLE:')
    if 'f' in roles:
        import ffn
        ffn.ffn_role(g)
    e('IDLE_ROLE:', 's_waitcnt vmcnt(0)', 's_barrier')
    g.signal_ready(10)
    e('s_waitcnt vmcnt(0)', 'GIVEUP:')
    if opt.get('diag'):
        rid, w, reg = opt['diag']
        e(f's_lshl_b32 s33, {sX}, 5', f's_add_u32 s33, s33, {sT}', f's_cmp_lg_u32 s33, {rid}', 's_cbranch_scc1 EXIT', f's_cmp_lg_u32 {sW}, {w}', 's_cbranch_scc1 EXIT',
          's_lshl_b32 s33, s60, 6', f's_add_u32 s33, s33, {reg}', 's_lshl_b32 s33, s33, 15', 's_mov_b64 exec, -1', 's_nop 15',
          'DG:', 's_cmp_eq_u32 s33, 0', 's_cbranch_scc1 EXIT', 'v_mfma_f32_16x16x32_bf16 v[0:3], v[4:7], v[4:7], v[0:3]', 's_sub_u32 s33, s33, 1', 's_branch DG')
    e('EXIT:', 's_endpgm')
    g.L += g.tail
    lines, npad = asmlib.fix_hazards(g.L, verbose)
    errs = asmlib.check_waits(lines)
    for x in errs[:8]: print('WAIT?', x, file=sys.stderr)
    if verbose: print('padding', npad, 'lines', len(lines), file=sys.stderr)
    body = [l if l.endswith(':') else '  ' + l for l in lines]
    return '\n'.join(header() + body + footer()) + '\n'


if __name__ == '__main__':
    opt = json.loads(sys.argv[2]) if len(sys.argv) > 2 else {}
    open(sys.argv[1], 'w').write(generate(opt, True))
```

```python
from layout import *

NAME = "adaLN_cond__memory_aug_recurrent_mem_tr__glu_gated_swiglu__prompt_kernel"

sW, sX, sT, sBUD, sMODE = 's3', 's4', 's5', 's6', 's7'
WS = 's[8:11]'
DBG = 's[12:15]'
RA = 's[16:19]'; RB = 's[20:23]'; RC = 's[24:27]'; RD = 's[28:31]'
sOVF = 's32'
P_X, P_MEM0, P_WQ, P_WK, P_WV, P_WO, P_SEG, P_BX, P_W1, P_W3, P_W2, P_C, P_WMOD, P_OUT, P_DBG, P_WS = [64 + 2 * i for i in range(16)]


def vr(a, n=1):
    return f'v{a}' if n == 1 else f'v[{a}:{a + n - 1}]'


def ar(a, n=1):
    return f'a{a}' if n == 1 else f'a[{a}:{a + n - 1}]'


class Gen:
    def __init__(self, opt):
        self.L = []
        self.opt = opt
        self.uid = 0
        self.tail = []

    def e(self, *lines):
        for s in lines:
            for l in s.split('\n'):
                l = l.strip()
                if l: self.L.append(l)

    def lab(self, p):
        self.uid += 1
        return f'{p}_{self.uid}'

    def srd(self, r, ptr, nbytes):
        b = int(r[2:r.index(':')])
        self.e(f's_mov_b32 s{b}, s{ptr}', f's_mov_b32 s{b+1}, s{ptr+1}', f's_mov_b32 s{b+2}, {nbytes}', f's_mov_b32 s{b+3}, 0x00020000')

    def site(self, n):
        return [f's_mov_b32 s60, {n}'] if self.opt.get('diag') else []

    def retry(self, label, sleep=0, site=0):
        self.e(*self.site(site))
        if sleep: self.e(f's_sleep {sleep}')
        self.e(f's_sub_u32 {sBUD}, {sBUD}, 1', 's_cbranch_scc1 GIVEUP', f's_branch {label}')

    def stamp(self, idx_sreg_or_int, slot, tmpv, tmps='s[62:63]'):
        if not self.opt.get('stamps'): return
        lo = tmps[2:tmps.index(':')]
        self.e(f's_memtime {tmps}', 's_waitcnt lgkmcnt(0)', f'v_mov_b32 v{tmpv}, s{lo}')
        if isinstance(idx_sreg_or_int, int):
            self.e(f's_add_u32 s{lo}, s61, {(idx_sreg_or_int * 8 + slot) * 4}')
        else:
            self.e(f's_lshl_b32 s{lo}, {idx_sreg_or_int}, 5', f's_add_u32 s{lo}, s{lo}, s61', f's_add_u32 s{lo}, s{lo}, {slot * 4}')
        self.e(f'buffer_store_dword v{tmpv}, off, {WS}, s{lo}')

    def rst(self, slot, tmpv=0, idx=None, sh=4):
        if not self.opt.get('rst'): return
        self.e('s_memrealtime s[98:99]', 's_waitcnt lgkmcnt(0)', f'v_mov_b32 v{tmpv}, s98')
        if idx is None: self.e('s_mov_b32 s98, s100')
        else: self.e(f's_lshl_b32 s98, {idx}, {sh}', 's_add_u32 s98, s98, s100')
        self.e(f'buffer_store_dword v{tmpv}, off, {WS}, s98 offset:{slot*4}')

    def dbgt(self, word, tmpv, x=None, clk=False):
        if not self.opt.get('dbgt'): return
        l = self.lab('DT')
        self.e('s_memtime s[98:99]' if clk else 's_memrealtime s[98:99]', 's_waitcnt lgkmcnt(0)', f's_sub_u32 s98, s98, {"s101" if clk else "s96"}', f'v_mov_b32 v{tmpv}, s98',
               f's_or_b32 s99, {sT}, {sW}', 's_cmp_lg_u32 s99, 0', f's_cbranch_scc1 {l}')
        if x is not None: self.e(f's_cmp_lg_u32 {sX}, {x}', f's_cbranch_scc1 {l}')
        self.e(f'buffer_store_dword v{tmpv}, off, {DBG}, 0 offset:{word*4} sc1', f'{l}:')

    def cst(self, k):
        if self.opt.get('cst'): self.e(f's_memtime s[{72+2*k}:{73+2*k}]')

    def cst_flush(self, idx, t0, t1, l16):
        if not self.opt.get('cst'): return
        e = self.e
        e('s_waitcnt lgkmcnt(0)')
        for k in range(12): e(f'v_writelane_b32 v{t0}, s{72+2*k}, {k}')
        e(f's_lshl_b32 s33, {idx}, 6', 's_add_u32 s33, s33, s61', f'v_lshrrev_b32 v{t1}, 2, v{l16}', 's_mov_b64 exec, 0xffff',
          f'buffer_store_dword v{t0}, v{t1}, {WS}, s33 offen', 's_mov_b64 exec, -1')

    def clk(self, tmpv):
        if not self.opt.get('rst'): return
        self.e('s_memtime s[98:99]', 's_waitcnt lgkmcnt(0)', 's_sub_u32 s98, s98, s101', f'v_mov_b32 v{tmpv}, s98', f'buffer_store_dword v{tmpv}, off, {WS}, s100 offset:28')

    def dump(self, name, regs, l16, tmp):
        if self.opt.get('dump') != name: return
        e = self.e
        e('s_nop 15', 's_waitcnt vmcnt(0) lgkmcnt(0)', f's_lshl_b32 s33, {sX}, 5', f's_add_u32 s33, s33, {sT}', 's_lshl_b32 s33, s33, 19',
          f's_lshl_b32 s34, {sW}, 17', 's_add_u32 s33, s33, s34', f's_add_u32 s33, s33, {DUMP}',
          f'v_mbcnt_lo_u32_b32 v{tmp}, -1, 0', f'v_mbcnt_hi_u32_b32 v{tmp}, -1, v{tmp}', f'v_lshlrev_b32 v{tmp}, 2, v{tmp}')
        for n, r in enumerate(regs):
            e(f'buffer_store_dword {r}, v{tmp}, {WS}, s33 offen', 's_add_u32 s33, s33, 256')
        e('s_waitcnt vmcnt(0)', 's_endpgm')

    def prologue(self):
        e = self.e
        opt = self.opt
        e('s_cmp_ge_u32 s2, 256', 's_cbranch_scc1 EXIT')
        if opt.get('rst') or opt.get('dbgt'): e('s_memrealtime s[96:97]', 's_memtime s[94:95]', 's_waitcnt lgkmcnt(0)', 's_mov_b32 s101, s94')
        e('s_load_dwordx16 s[64:79], s[0:1], 0', 's_load_dwordx16 s[80:95], s[0:1], 64')
        e(f's_getreg_b32 {sX}, hwreg(HW_REG_XCC_ID,0,4)')
        e('v_lshrrev_b32 v1, 6, v0', 'v_and_b32 v0, 63, v0', f'v_readfirstlane_b32 {sW}, v1')
        e(f's_and_b32 {sX}, {sX}, 7', f's_mov_b32 {sBUD}, {opt.get("budget", 400000)}', f's_mov_b32 {sOVF}, 0')
        if opt.get('fake_xcc'):
            e(f's_lshr_b32 {sX}, s2, 6', f's_lshl_b32 {sX}, {sX}, 1')
        e('s_waitcnt lgkmcnt(0)')
        self.srd(WS, P_WS, WS_BYTES)
        self.srd(DBG, P_DBG, 256)
        scope = ' sc1' if opt.get('fake_xcc') else ''
        e(f's_cmp_lg_u32 {sW}, 0', 's_cbranch_scc1 TICKET_WAIT')
        e('v_mov_b32 v2, 1', f's_lshl_b32 s33, {sX}, 2', 's_mov_b64 exec, 1',
          f'buffer_atomic_add v2, off, {DBG}, s33 sc0{scope}', 'v_mov_b32 v3, 0', 's_waitcnt vmcnt(0)',
          'ds_write_b32 v3, v2', 's_mov_b64 exec, -1', 's_waitcnt lgkmcnt(0)')
        e('TICKET_WAIT:', 's_barrier', 'v_mov_b32 v3, 0', 'ds_read_b32 v2, v3', 's_waitcnt lgkmcnt(0)',
          f'v_readfirstlane_b32 {sT}, v2', f's_cmp_ge_u32 {sT}, 32', 's_cbranch_scc1 OVERFLOW', 'ROLE_KNOWN:')
        e(f's_lshl_b32 s33, {sX}, 5', f's_add_u32 s33, s33, {sT}')
        if opt.get('rst'):
            e('s_lshl_b32 s100, s33, 12', f's_lshl_b32 s34, {sW}, 10', 's_add_u32 s100, s100, s34', f's_add_u32 s100, s100, {STAMP + 4*MB}',
              'v_mov_b32 v114, s96', f'buffer_store_dword v114, off, {WS}, s100')
            self.rst(1, 114)
        if opt.get('stamps') or opt.get('cst'):
            e(f's_lshl_b32 s61, s33, 14', f's_lshl_b32 s34, {sW}, 12', 's_add_u32 s61, s61, s34', f's_add_u32 s61, s61, {STAMP}')
        e('v_mov_b32 v2, -1', 'v_mov_b32 v3, -1', 'v_lshlrev_b32 v4, 3, v0', f's_lshl_b32 s34, s33, 11', f's_lshl_b32 s35, {sW}, 9',
          's_add_u32 s34, s34, s35', f's_add_u32 s34, s34, {MHIST}', f'buffer_store_dwordx2 v[2:3], v4, {WS}, s34 offen sc1')
        if not opt.get('keep_flags'):
            e('v_mov_b32 v6, 0', 'v_mov_b32 v7, 0', f's_lshl_b32 s34, s33, 9', f's_add_u32 s34, s34, {FLAGS}',
              f's_cmp_lg_u32 {sW}, 0', 's_cbranch_scc1 FLAGS_DONE', f'buffer_store_dwordx2 v[6:7], v4, {WS}, s34 offen sc1', 'FLAGS_DONE:')
        t = []
        a = t.append
        a('OVERFLOW:'); a('s_barrier'); a(f's_cmp_lg_u32 {sW}, 0'); a('s_cbranch_scc1 OVF_WAIT')
        a('v_mov_b32 v2, 1'); a('s_mov_b64 exec, 1'); a(f'buffer_atomic_add v2, off, {DBG}, 0 offset:{DB_OVF*4} sc0 sc1')
        a('s_waitcnt vmcnt(0)'); a('v_readfirstlane_b32 s34, v2'); a('s_mov_b64 exec, -1'); a('v_lshlrev_b32 v4, 2, v0')
        a('OVF_POLL:'); a(f'buffer_load_dword v2, v4, {DBG}, 0 offen offset:128 sc1'); a('s_waitcnt vmcnt(0)')
        a(f'v_readlane_b32 s35, v2, {DB_OVF-32}')
        for x in range(8):
            a(f'v_readlane_b32 s{40+x}, v2, {DB_CNTG-32+x}')
        for x in range(8):
            a(f's_add_u32 s35, s35, s{40+x}')
        a('s_cmp_eq_u32 s35, 256'); a('s_cbranch_scc1 OVF_PICK'); a('s_sleep 8')
        a(f's_sub_u32 {sBUD}, {sBUD}, 1'); a('s_cbranch_scc1 GIVEUP'); a('s_branch OVF_POLL')
        a('OVF_PICK:')
        for x in range(8):
            a(f's_sub_u32 s35, 32, s{40+x}'); a(f's_add_u32 s36, s{40+x}, s34'); a(f's_add_u32 s36, s36, {x*32}')
            a('s_cmp_lt_u32 s34, s35'); a('s_cbranch_scc1 OVF_FOUND'); a('s_sub_u32 s34, s34, s35')
        a('s_branch GIVEUP')
        a('OVF_FOUND:'); a('v_mov_b32 v2, s36'); a('v_mov_b32 v3, 0'); a('ds_write_b32 v3, v2'); a('s_waitcnt lgkmcnt(0)')
        a('OVF_WAIT:'); a('s_barrier'); a('v_mov_b32 v3, 0'); a('ds_read_b32 v2, v3'); a('s_waitcnt lgkmcnt(0)')
        a(f'v_readfirstlane_b32 {sT}, v2'); a(f's_lshr_b32 {sX}, {sT}, 5'); a(f's_and_b32 {sT}, {sT}, 31')
        a(f's_mov_b32 {sOVF}, 1'); a('s_branch ROLE_KNOWN')
        self.tail += t

    def signal_ready(self, tv):
        l = self.lab('SIG')
        self.e(f's_cmp_lg_u32 {sW}, 0', f's_cbranch_scc1 {l}',
               f's_lshl_b32 s33, {sX}, 2', f's_add_u32 s33, s33, {DB_CNTG*4}', f's_cmp_eq_u32 {sOVF}, 0',
               f's_cselect_b32 s33, s33, {DB_CNTO*4}', f'v_mov_b32 v{tv}, 1', 's_mov_b64 exec, 1',
               f'buffer_atomic_add v{tv}, off, {DBG}, s33 sc1', 's_mov_b64 exec, -1', f'{l}:')

    def wait_ready(self, vlane, t0, t1):
        e = self.e
        l = self.lab('RDY'); ok = self.lab('RDYOK')
        e(f'v_lshlrev_b32 v{t1}, 2, v{vlane}', f'{l}:', f'buffer_load_dword v{t0}, v{t1}, {DBG}, 0 offen offset:128 sc1', 's_waitcnt vmcnt(0)',
          f'v_readlane_b32 {sMODE}, v{t0}, {DB_OVF-32}', f'v_readlane_b32 s33, v{t0}, {DB_CNTO-32}')
        for x in range(8):
            e(f'v_readlane_b32 s34, v{t0}, {DB_CNTG-32+x}', 's_add_u32 s33, s33, s34')
        e(f's_cmp_ge_u32 s33, {self.opt.get("nready", 256)}', f's_cbranch_scc1 {ok}')
        self.retry(l, 4, 5)
        e(f'{ok}:')
        if self.opt.get('force_safe'): e(f's_mov_b32 {sMODE}, 1')
        self.rst(3, t0)

    def load_attn_weights(self, tag):
        e = self.e
        QB = 32768
        self.srd(RA, P_WO, 4 * MB); self.srd(RB, P_WK, 4 * MB); self.srd(RC, P_WV, 4 * MB); self.srd(RD, P_WQ, 4 * MB)
        vO, vD0, vD1, vT = 1, 2, 3, 4
        vWB = 8
        e('v_bfe_u32 v10, v0, 4, 1', 'v_lshlrev_b32 v10, 14, v10', 'v_lshrrev_b32 v11, 5, v0', 'v_lshlrev_b32 v11, 12, v11',
          'v_and_b32 v12, 15, v0', 'v_lshlrev_b32 v13, 3, v12', f's_lshl_b32 s33, {sW}, 8', 'v_add3_u32 v10, v10, v11, v13', f'v_add_u32 v{vO}, s33, v10')
        e('v_lshrrev_b32 v10, 4, v0', 'v_lshrrev_b32 v11, 1, v12', 'v_xor_b32 v11, v11, v10', 'v_lshlrev_b32 v11, 5, v11',
          'v_and_b32 v13, 1, v0', 'v_lshlrev_b32 v13, 4, v13', 'v_lshlrev_b32 v10, 13, v10', 'v_add3_u32 v10, v10, v11, v13',
          f's_lshl_b32 s33, {sW}, 17', f'v_add_u32 v{vD0}, s33, v10', f'v_xor_b32 v{vD1}, 0x80, v{vD0}')
        e('v_bfe_u32 v10, v0, 2, 2', 'v_lshrrev_b32 v11, 4, v0', 'v_lshlrev_b32 v13, 3, v11', 'v_add_u32 v13, v13, v10', 'v_lshlrev_b32 v13, 8, v13',
          'v_and_b32 v11, 1, v11', 'v_lshlrev_b32 v11, 2, v11', 'v_add_u32 v10, v10, v11', f's_lshl_b32 s33, {sW}, 1', 'v_xor_b32 v10, s33, v10',
          'v_lshlrev_b32 v10, 5, v10', 'v_and_b32 v11, 3, v0', 'v_lshlrev_b32 v11, 3, v11', 'v_add3_u32 v10, v10, v11, v13',
          f'v_add_u32 v{vT}, {QB}, v10', f'v_xor_b32 v{vT+1}, 32, v{vT}', f'v_add_u32 v{vT+2}, 0x10000, v{vT}', f'v_add_u32 v{vT+3}, 0x10000, v{vT+1}')
        e(f's_lshl_b32 s33, {sW}, 12', f's_add_u32 s33, s33, {QB}', 'v_lshlrev_b32 v10, 4, v0', f'v_add_u32 v{vWB}, s33, v10', f'v_add_u32 v{vWB+1}, 0x10000, v{vWB}')
        e(f's_lshl_b32 s36, {sT}, 17', f's_lshl_b32 s37, {sT}, 8', f's_lshl_b32 s38, {sW}, 12', f's_add_u32 s38, s38, {QB}',
          's_mov_b32 s39, 0x05040100', 's_mov_b32 s40, 0x07060302')
        items = [('o', c, half, jj) for c in range(2) for half in range(2) for jj in range(2)]
        items += [('w', m, c) for m in 'kvq' for c in range(8)]
        D = 6
        ST = 16
        done = self.lab('LOADED')
        labs = [self.lab(f'LDW{w}') for w in range(4)]
        for w in range(1, 4):
            e(f's_cmp_eq_u32 {sW}, {w}', f's_cbranch_scc1 {labs[w]}')
        for w in range(4):
            e(f'{labs[w]}:')
            nops = [8 if it[0] == 'o' else 4 for it in items]

            def issue(i):
                it = items[i]
                if it[0] == 'o':
                    _, c, half, jj = it
                    base = ST + 16 * (i % D)
                    for ph in range(2):
                        e(f's_add_u32 s33, s36, {(64*c + 8*jj + 32*ph) * 1024}')
                        for y in range(8):
                            if (y // 2) % 2 != ph: continue
                            r = 2 * (y // 4) + y % 2
                            e(f'buffer_load_dwordx2 {vr(base + 2*y, 2)}, v{vO}, {RA}, s33 offen offset:{r*1024 + half*128}')
                else:
                    _, m, c = it
                    R = {'k': RB, 'v': RC, 'q': RD}[m]
                    for j in range(4):
                        e(f's_add_u32 s33, s37, {(64*c + 4*j) * 8192}', f's_add_u32 m0, s38, {c*16384 + j*1024}', 's_nop 0',
                          f'buffer_load_dwordx4 v{vD0 + j//2}, {R}, s33 offen lds')

            def writeback(c, buf):
                for t in range(2):
                    for jj in range(2):
                        e(f'ds_write_b128 v{vWB + c//4}, {vr(buf + t*8 + jj*4, 4)} offset:{(c%4)*16384 + t*2048 + jj*1024}')

            for i in range(D): issue(i)
            for i, it in enumerate(items):
                after = sum(nops[i+1:min(i + D, len(items))])
                e(f's_waitcnt vmcnt({after})')
                if it[0] == 'o':
                    _, c, half, jj = it
                    base = ST + 16 * (i % D)
                    for x in range(4):
                        for yp in range(4):
                            d = 4 * half + x
                            e(f'v_perm_b32 v{128 + (d*2 + c)*8 + jj*4 + yp}, v{base + 2*(2*yp+1) + x//2}, v{base + 2*(2*yp) + x//2}, s{39 + x%2}')
                else:
                    _, m, c = it
                    e('s_barrier')
                    if m == 'k' and c == 0: self.signal_ready(10)
                    slot = (c - 2 * w) % 8
                    if m == 'q' and c > 0: writeback(c - 1, ST + 16 * ((c - 1) % 2))
                    for t in range(2):
                        for jj in range(2):
                            for hh in range(2):
                                if m == 'q': dst = vr(ST + 16 * (c % 2) + t*8 + jj*4 + hh*2, 2)
                                else: dst = ar((0 if m == 'k' else 128) + (slot*2 + t)*8 + jj*4 + hh*2, 2)
                                e(f'ds_read_b64_tr_b16 {dst}, v{vT + t + 2*(c//4)} offset:{(c%4)*16384 + jj*8192 + hh*1024}')
                    e('s_waitcnt lgkmcnt(0)')
                if i + D < len(items): issue(i + D)
            e('s_barrier')
            writeback(7, ST + 16)
            e('s_waitcnt lgkmcnt(0)')
            if w < 3: e(f's_branch {done}')
        e(f'{done}:', 's_barrier')
        self.rst(2, 114); self.dbgt(8, 114, 0)


def smf(d, a, b, idx):
    return f'v_smfmac_f32_16x16x64_bf16 {vr(d,4)}, {vr(a,4)}, {b}, v{idx}'


def opnd(x):
    return x if isinstance(x, str) else vr(x, 4)


def mf32(d, a, b, c):
    return f'v_mfma_f32_16x16x32_bf16 {vr(d,4)}, {opnd(a)}, {opnd(b)}, {vr(c,4) if c is not None else 0}'


def zero(r, n):
    return [f'v_mov_b64 {vr(r+i,2)}, 0' for i in range(0, n, 2)]


def cvt(d, a, b):
    return f'v_cvt_pk_bf16_f32 v{d}, v{a}, v{b}'


def unpack(lo, hi, p):
    return [f'v_and_b32 v{hi}, 0xffff0000, v{p}', f'v_lshlrev_b32 v{lo}, 16, v{p}']


def rnd2(a, b, t):
    return [cvt(t, a, b)] + unpack(a, b, t)


def cross_rows(op, regs, tmps):
    L = []
    for sw in ('v_permlane16_swap_b32', 'v_permlane32_swap_b32'):
        L += [f'v_mov_b32 v{t}, v{r}' for r, t in zip(regs, tmps)]
        L += [f'{sw} v{r}, v{t}' for r, t in zip(regs, tmps)]
        L += [f'{op} v{r}, v{r}, v{t}' for r, t in zip(regs, tmps)]
    return L


def wave_sum(regs, tmps):
    L = []
    for k in (1, 2, 4, 8):
        L += [f'v_add_f32_dpp v{r}, v{r}, v{r} row_ror:{k} row_mask:0xf bank_mask:0xf' for r in regs]
    return L + cross_rows('v_add_f32', regs, tmps)


def sel_setup(g, lam4, seed, t0, t1):
    g.e(f'v_mov_b32 v{t0}, 0x3f80', f'v_mov_b32 v{t1}, 0x3f800000', f'v_cmp_eq_u32 vcc, 0, v{lam4}', f'v_cndmask_b32 v{t0}, v{t1}, v{t0}, vcc',
        f'v_cmp_gt_u32 vcc, 2, v{lam4}', f'v_cndmask_b32 v{seed}, 0, v{t0}, vcc')
    for j in range(4):
        m = 0x000f000f << (4 * j)
        g.e(f's_mov_b32 s{SELM+2*j}, {m:#x}', f's_mov_b32 s{SELM+1+2*j}, {m:#x}')


SELM = 52


def sel_build(sel, seed):
    return [f'v_cndmask_b32 v{sel+j}, 0, v{seed}, s[{SELM+2*j}:{SELM+1+2*j}]' for j in range(4)]


def ln_finish(a, b, mean, m2, t):
    return [f'v_mul_f32 v{m2}, 0x3b000000, v{m2}', *rnd2(mean, m2, t), f'v_add_f32 v{m2}, 0x3727c5ac, v{m2}', cvt(m2, m2, m2), f'v_lshlrev_b32 v{m2}, 16, v{m2}',
            f'v_sqrt_f32 v{m2}, v{m2}', 's_nop 0', cvt(m2, m2, m2), f'v_lshlrev_b32 v{m2}, 16, v{m2}', f'v_rcp_f32 v{m2}, v{m2}']
```
